```python
import torch

def _softmax(x, axis=-1):
    return torch.softmax(x, dim=axis)
def _gelu(x):
    return torch.nn.functional.gelu(x, approximate="tanh")
def _silu(x):
    return torch.nn.functional.silu(x)
def _sigmoid(x):
    return torch.sigmoid(x)
def _layernorm(x, axis=-1, eps=1e-5):
    m = x.mean(dim=axis, keepdim=True)
    v = x.var(dim=axis, keepdim=True, unbiased=False)
    return (x - m) / torch.sqrt(v + eps)
def _scatter_add(tgt, idx, src, axis=0):
    return tgt.clone().index_add_(axis, idx, src)
def _segment_sum(src, seg, n):
    out = torch.zeros((n,) + src.shape[1:], dtype=src.dtype)
    return out.index_add_(0, seg, src)
def _pad(x, pw):
    flat = tuple(v for pair in reversed(pw) for v in pair)
    return torch.nn.functional.pad(x, flat)

kernel_name = 'parallel_sum__sliding_local_dilated__mixer_token_mlp__prompt'

def setup_inputs():

    _w = (lambda a: (lambda t: t.to(torch.bfloat16) if t.is_floating_point() else t)(torch.as_tensor(a)))
    def _A_setup():
        B, S, D = 1, 2048, 640
        return {
            "x": _w((lambda *s: torch.randn(*s, dtype=torch.bfloat16) * 0.05)(B, S, D)),
            "wqkv": _w((lambda *s: torch.randn(*s, dtype=torch.bfloat16) * 0.05)(D, 3 * D)),
            "wo": _w((lambda *s: torch.randn(*s, dtype=torch.bfloat16) * 0.05)(D, D)),
        }
    _A_in = _A_setup()

    def _B_setup():
        B, S, D, F = 1, 2048, 640, 1728
        return {
            "x": _w((lambda *s: torch.randn(*s, dtype=torch.bfloat16) * 0.05)(B, S, D)),
            "w1": _w((lambda *s: torch.randn(*s, dtype=torch.bfloat16) * 0.8)(S, F) * (S ** -0.5)),
            "b1": _w((lambda *s: torch.randn(*s, dtype=torch.bfloat16) * 0.8)(F) * 0.02),
            "w2": _w((lambda *s: torch.randn(*s, dtype=torch.bfloat16) * 0.8)(F, S) * (F ** -0.5)),
            "b2": _w((lambda *s: torch.randn(*s, dtype=torch.bfloat16) * 0.8)(S) * 0.02),
        }
    _B_in = _B_setup()

    return {
        "A_x": _A_in["x"],
        "A_wqkv": _A_in["wqkv"],
        "A_wo": _A_in["wo"],
        "B_x": _B_in["x"],
        "B_w1": _B_in["w1"],
        "B_b1": _B_in["b1"],
        "B_w2": _B_in["w2"],
        "B_b2": _B_in["b2"],
    }

def reference(A_x, A_wqkv, A_wo, B_x, B_w1, B_b1, B_w2, B_b2):
    def _A_ref(x, wqkv, wo):
        B, S, D = x.shape
        H = 32; Dh = D // H
        W, dil = 8, 2
        qkv = (lambda x, *d: x.permute(*d))((x @ wqkv).reshape(B, S, 3, H, Dh), 2, 0, 3, 1, 4)
        q, k, v = qkv[0], qkv[1], qkv[2]
        scale = Dh ** -0.5
        pos = torch.arange(S)
        off = torch.arange(W) * dil
        idx = pos[:, None] - off[None, :]
        mask = idx >= 0
        idx_c = torch.where(mask, idx, 0).reshape(-1)
        kg = k[:, :, idx_c, :].reshape(B, H, S, W, Dh)
        vg = v[:, :, idx_c, :].reshape(B, H, S, W, Dh)
        logits = torch.einsum("bhsd,bhswd->bhsw", q, kg) * scale
        logits = torch.where(mask[None, None, :, :], logits, -1e9)
        attn = _softmax(logits, axis=-1)
        o = torch.einsum("bhsw,bhswd->bhsd", attn, vg)
        return (lambda x, *d: x.permute(*d))(o, 0, 2, 1, 3).reshape(B, S, D) @ wo

    def _B_ref(x, w1, b1, w2, b2):
        B, S, D = x.shape
        h = _layernorm(x, axis=-1)
        u = torch.einsum("bsd,sf->bdf", h, w1) + b1
        u = _gelu(u)
        y = torch.einsum("bdf,fs->bds", u, w2) + b2
        return (lambda x, *d: x.permute(*d))(y, 0, 2, 1)

    x = A_x
    xn = _layernorm(x, axis=-1)
    return x + _A_ref(xn, A_wqkv, A_wo) + _B_ref(xn, B_w1, B_b1, B_w2, B_b2)
```

```python
import re

class Asm:
    def __init__(self):
        self.lines = []
        self._uid = 0
    def __call__(self, text):
        for l in text.split("\n"):
            l = l.strip()
            if l:
                self.lines.append(l)
    def c(self, text):
        self.lines.append("; " + text)
    def label(self, name):
        self.lines.append(name + ":")
    def uid(self, p="L"):
        self._uid += 1
        return f"{p}_{self._uid}"
    def text(self):
        out = []
        for l in self.lines:
            if l.endswith(":") or l.startswith(".") or l.startswith(";"):
                out.append(l)
            else:
                out.append("  " + l)
        return "\n".join(out) + "\n"

_reg_re = re.compile(r"^(-?)(?:abs\()?([vas])(?:\[(\d+):(\d+)\]|(\d+))\)?$")
def parse_reg(tok):
    tok = tok.strip()
    m = _reg_re.match(tok)
    if m:
        k = m.group(2)
        if m.group(3) is not None:
            return [(k, i) for i in range(int(m.group(3)), int(m.group(4)) + 1)]
        return [(k, int(m.group(5)))]
    if tok == "vcc": return [("s", "vcc")]
    if tok in ("vcc_lo", "vcc_hi"): return [("s", "vcc")]
    if tok == "exec": return [("s", "exec")]
    if tok == "m0": return [("s", "m0")]
    return []

TRANS = ("v_exp_f32", "v_log_f32", "v_rcp_f32", "v_rsq_f32", "v_sqrt_f32", "v_sin_f32", "v_cos_f32", "v_rcp_iflag_f32")

class Ins:
    __slots__ = ("text", "op", "dst", "src", "kind", "dpp", "lds", "sdwa", "srcC", "srcAB", "sdst", "nop")
    def __init__(self, text):
        self.text = text
        t = text.split(";")[0].strip()
        sp = t.split(None, 1)
        op = sp[0]; self.op = op
        rest = sp[1] if len(sp) > 1 else ""
        toks = [x.strip() for x in re.split(r",(?![^\[]*\])", rest)] if rest else []
        ops = []
        for i, tk in enumerate(toks):
            first = tk.split()[0] if tk.split() else ""
            ops.append(first)
        mods = rest
        self.dpp = ("row_" in mods) or ("quad_perm" in mods) or op.endswith("_dpp")
        self.sdwa = ("sdwa" in op) or ("dst_sel" in mods)
        self.lds = bool(re.search(r"\blds\b", mods)) or "load_lds" in op
        self.dst = []; self.src = []; self.srcC = []; self.srcAB = []; self.sdst = []; self.nop = 0
        R = [parse_reg(o) for o in ops]
        base = re.sub(r"_(e32|e64|dpp|sdwa)$", "", op)
        if op == "s_nop":
            self.kind = "nop"; self.nop = int(ops[0], 0) + 1
        elif op.startswith("v_mfma"):
            self.kind = "mfma"; self.dst = R[0]; self.srcAB = R[1] + R[2]; self.srcC = R[3]; self.src = self.srcAB + self.srcC
        elif op.startswith("v_"):
            self.kind = "trans" if base in TRANS else "valu"
            if base.startswith("v_cmp"):
                self.sdst = R[0]; self.src = sum(R[1:], [])
                if base.startswith("v_cmpx"): self.sdst = self.sdst + [("s", "exec")]
            elif base in ("v_readfirstlane_b32", "v_readlane_b32"):
                self.kind = "readlane"; self.sdst = R[0]; self.src = sum(R[1:], [])
            elif base in ("v_permlane32_swap_b32", "v_permlane16_swap_b32"):
                self.kind = "permlane"; self.dst = R[0] + R[1]; self.src = R[0] + R[1]
            elif base in ("v_add_co_u32", "v_addc_co_u32", "v_sub_co_u32", "v_subb_co_u32", "v_subrev_co_u32"):
                self.dst = R[0]; self.sdst = R[1]; self.src = sum(R[2:], [])
            elif base in ("v_mad_u64_u32",):
                self.dst = R[0]; self.sdst = R[1]; self.src = sum(R[2:], [])
            else:
                self.dst = R[0]; self.src = sum(R[1:], [])
                if base in ("v_fmac_f32", "v_dot2c_f32_bf16", "v_pk_fmac_f16", "v_writelane_b32") or self.dpp or self.sdwa:
                    self.src = self.src + R[0]
                if base == "v_cndmask_b32" and len(ops) == 3:
                    self.src = self.src + [("s", "vcc")]
        elif op.startswith("ds_"):
            self.kind = "ds"
            if op.startswith("ds_read") or op.startswith("ds_bpermute") or op.startswith("ds_swizzle") or op.startswith("ds_permute"):
                self.dst = R[0]; self.src = sum(R[1:], [])
            else:
                self.src = sum(R, [])
        elif op.startswith("buffer_") or op.startswith("global_"):
            self.kind = "vmem"
            if op in ("buffer_wbl2", "buffer_inv"):
                pass
            elif self.lds:
                self.src = sum(R, []) + [("s", "m0")]
            elif "_load" in op:
                self.dst = R[0]; self.src = sum(R[1:], [])
            elif "atomic" in op:
                self.src = sum(R, [])
                if "sc0" in mods:
                    self.dst = R[0] if op.startswith("buffer_") else R[0]
            else:
                self.src = sum(R, [])
        elif op.startswith("s_"):
            self.kind = "salu"
            if op.startswith(("s_cmp", "s_bitcmp", "s_cbranch", "s_branch", "s_waitcnt", "s_barrier", "s_endpgm", "s_sleep", "s_setprio")):
                self.src = sum(R, [])
            else:
                self.sdst = R[0] if R else []; self.src = sum(R[1:], [])
                if "saveexec" in op: self.sdst = self.sdst + [("s", "exec")]
        else:
            raise ValueError("unknown instruction: " + text)
    def isvalu(self):
        return self.kind in ("valu", "trans", "readlane", "permlane")
    def store_data(self):
        if self.kind != "vmem" or self.lds: return []
        if re.search(r"store_dwordx[34]", self.op):
            t = self.text.split(";")[0].split(None, 1)[1]
            toks = [x.strip().split()[0] for x in re.split(r",(?![^\[]*\])", t)]
            return parse_reg(toks[0]) if self.op.startswith("buffer_") else parse_reg(toks[1])
        return []

def mfma_passes(op):
    if "32x32" in op: return 8
    return 4

def need(p, c):
    n = 0
    def ov(a, b): return bool(set(a) & set(b))
    vec = lambda regs: [r for r in regs if r[0] in "va"]
    if p.isvalu() and p.dst:
        if c.kind == "mfma" and ov(p.dst, c.src): n = max(n, 2)
        if c.kind == "permlane" and ov(p.dst, c.src): n = max(n, 2)
        if c.isvalu() and c.dpp and ov(p.dst, c.src): n = max(n, 2)
        if c.kind == "readlane" and ov(p.dst, c.src): n = max(n, 1)
        if p.kind == "trans" and c.isvalu() and c.kind != "trans" and ov(p.dst, c.src): n = max(n, 1)
        if p.kind == "trans" and c.kind == "trans" and ov(p.dst, c.src): n = max(n, 1)
        if p.sdwa and c.isvalu() and (ov(p.dst, c.src) or ov(p.dst, c.dst)): n = max(n, 1)
    if p.isvalu() and p.sdst:
        if c.isvalu() and ov(p.sdst, c.src): n = max(n, 4 if c.kind == "readlane" else 2)
        if c.kind in ("vmem",) and ov(p.sdst, c.src): n = max(n, 5)
        if c.kind == "salu" and ov(p.sdst, c.src): n = max(n, 4)
        if ("s", "exec") in p.sdst and (c.kind == "mfma"): n = max(n, 4)
        if ("s", "exec") in p.sdst and c.isvalu() and c.dpp: n = max(n, 5)
    if p.kind == "mfma":
        ps = mfma_passes(p.op)
        big = {4: 8, 8: 12}[ps]; ovl = {4: 6, 8: 10}[ps]; war = {4: 3, 8: 7}[ps]
        if c.kind == "mfma":
            if ov(p.dst, c.srcAB): n = max(n, big)
            if ov(p.dst, c.srcC) and not (p.dst == c.srcC and ps == mfma_passes(c.op)): n = max(n, ovl)
            if ov(p.dst, c.dst) and not (p.dst == c.dst): n = max(n, ovl)
            if ov(p.dst, c.dst) and (p.dst == c.dst) and not c.srcC == p.dst: n = max(n, big)
        else:
            if ov(p.dst, c.src) or ov(p.dst, c.dst): n = max(n, big)
            if c.isvalu() and ov(p.srcC, c.dst): n = max(n, war)
    if p.kind == "salu" and ("s", "m0") in p.sdst and c.kind == "vmem" and c.lds: n = max(n, 1)
    sd = p.store_data()
    if sd and c.dst and ov(sd, c.dst): n = max(n, 2)
    return n

def is_ins(l):
    return not (l.endswith(":") or l.startswith(".") or l.startswith(";") or not l)

WINDOW = 24
def fix_hazards(lines, verbose=False):
    out = []
    hist = []
    inserted = 0
    def required(hist, c):
        req = 0; dist = 0
        for p in reversed(hist[-WINDOW:]):
            nd = need(p, c)
            if nd > dist: req = max(req, nd - dist)
            dist += p.nop if p.kind == "nop" else 1
            if dist >= 20: break
        return req
    for l in lines:
        if not is_ins(l):
            out.append(l); continue
        c = Ins(l)
        r = required(hist, c)
        while r > 0:
            k = min(r, 16)
            nl = f"s_nop {k-1}"
            out.append(nl); hist.append(Ins(nl)); inserted += 1; r -= k
        out.append(l); hist.append(c)
        if c.op in ("s_endpgm", "s_branch"):
            hist = []
    labels = {}
    for i, l in enumerate(out):
        if l.endswith(":") : labels[l[:-1]] = i
    problems = []
    for i, l in enumerate(out):
        if is_ins(l) and (l.startswith("s_cbranch") or l.startswith("s_branch")):
            tgt = l.split()[1]
            if tgt not in labels: continue
            j = labels[tgt]
            tail = [Ins(x) for x in out[max(0, i - 60):i + 1] if is_ins(x)]
            head = [Ins(x) for x in out[j:j + 60] if is_ins(x)][:WINDOW]
            h = list(tail)
            for c in head:
                r = required(h, c)
                if r > 0:
                    problems.append((l, c.text, r))
                h.append(c)
                if c.op in ("s_endpgm", "s_branch"): break
    if problems:
        for p in problems: print("HAZARD across branch:", p)
        raise SystemExit("hazard problems")
    if verbose: print("nops inserted:", inserted)
    return out
```

```python
from asmlib import Asm, fix_hazards

S_, D_, F_ = 2048, 640, 1728
X_BYTES = S_ * D_ * 2
WQKV_BYTES = D_ * 3 * D_ * 2
WO_BYTES = D_ * D_ * 2
W1_BYTES = S_ * F_ * 2
W2_BYTES = F_ * S_ * 2
OUT_BYTES = S_ * D_ * 2

WS_H = 0
WS_H_BYTES = 40 * 64 * 1024
WS_U = WS_H + WS_H_BYTES
WS_U_BYTES = 40 * 54 * 1024
WS_O = WS_U + WS_U_BYTES
WS_O_BYTES = 128 * 40 * 512
WS_P = WS_O + WS_O_BYTES
WS_P_BYTES = 32 * 8 * 20 * 1024
WS_ST = WS_P + WS_P_BYTES
WS_ST_BYTES = 2048 * 8
WS_FLAGS = WS_ST + WS_ST_BYTES
WS_END = WS_FLAGS + 65536

S_WG = 2
P_X, P_WQKV, P_WO, P_BX, P_W1, P_B1, P_W2, P_B2 = 16, 18, 20, 22, 24, 26, 28, 30
P_OUT, P_DBG, P_WS = 32, 34, 36

def load_kernargs(a):
    a("s_load_dwordx16 s[16:31], s[0:1], 0")
    a("s_load_dwordx4 s[32:35], s[0:1], 64")
    a("s_load_dwordx2 s[36:37], s[0:1], 80")

def make_srd(a, srd, ptr, nbytes, base_off=0):
    if base_off:
        a(f"s_add_u32 s{srd}, s{ptr}, {base_off}")
        a(f"s_addc_u32 s{srd+1}, s{ptr+1}, 0")
    else:
        a(f"s_mov_b32 s{srd}, s{ptr}")
        a(f"s_mov_b32 s{srd+1}, s{ptr+1}")
    a(f"s_mov_b32 s{srd+2}, {nbytes}")
    a(f"s_mov_b32 s{srd+3}, 0x20000")

def srd(n): return f"s[{n}:{n+3}]"
def vr(n, w=1): return f"v{n}" if w == 1 else f"v[{n}:{n+w-1}]"
def ar(n, w=1): return f"a{n}" if w == 1 else f"a[{n}:{n+w-1}]"
def sr(n, w=1): return f"s{n}" if w == 1 else f"s[{n}:{n+w-1}]"

def kernel_header(a, name):
    a(f".globl {name}")
    a(".p2align 8")
    a(f".type {name},@function")
    a.label(name)

def kernel_desc(name, vgpr, sgpr, accum):
    return (f".amdhsa_kernel {name}\n  .amdhsa_next_free_vgpr {vgpr}\n  .amdhsa_next_free_sgpr {sgpr}\n"
            f"  .amdhsa_accum_offset {accum}\n  .amdhsa_group_segment_fixed_size 0\n  .amdhsa_kernarg_size 88\n"
            f"  .amdhsa_user_sgpr_count 2\n  .amdhsa_user_sgpr_kernarg_segment_ptr 1\n"
            f"  .amdhsa_system_sgpr_workgroup_id_x 1\n  .amdhsa_float_denorm_mode_32 3\n.end_amdhsa_kernel\n")

EXP = {}
def emit_issue(a, L, slots):
    import common as _c
    for m in ([] if _c.EXP.get("nodma") else slots):
        sl = L["slots"][m]
        a(f"s_add_u32 m0, s{L['s_mb']}, {L['m0_step'] * m}")
        if sl.get("exec") is not None:
            a(f"s_mov_b64 exec, {sr(sl['exec'], 2)}")
        else:
            a("s_nop 0")
        a(f"buffer_load_dwordx4 v{sl['voff']}, {srd(sl['srd'])}, s{sl['soff']} offen {sl.get('aux','')} lds")
        if sl.get("exec") is not None:
            a("s_mov_b64 exec, -1")

def emit_advance(a, L):
    import common as _c
    for qi, (s, inc, end) in enumerate(L["advance"]):
        if qi in _c.EXP.get("freeze", ()): continue
        a(f"s_add_u32 s{s}, s{s}, {inc}")
        if end is not None:
            a(f"s_cmp_eq_u32 s{s}, {end}")
            a(f"s_cselect_b32 s{s}, 0, s{s}")
    a(f"s_add_u32 s{L['s_mb']}, s{L['s_mb']}, {L['stage_bytes']}")
    a(f"s_cmp_eq_u32 s{L['s_mb']}, s{L['s_mbend']}")
    a(f"s_cselect_b32 s{L['s_mb']}, s{L['s_mbbeg']}, s{L['s_mb']}")

def emit_loader_init(a, L, s_l, lds_base, s_start=None):
    a(f"s_lshl_b32 s{L['s_mb']}, s{s_l}, 10")
    if lds_base: a(f"s_add_u32 s{L['s_mb']}, s{L['s_mb']}, {lds_base}")
    a(f"s_mov_b32 s{L['s_mbbeg']}, s{L['s_mb']}")
    a(f"s_add_u32 s{L['s_mbend']}, s{L['s_mb']}, {L['S'] * L['stage_bytes']}")
    for (s, inc, end) in L["advance"]:
        if s_start is None: a(f"s_mov_b32 s{s}, 0")
        else: a(f"s_mul_i32 s{s}, s{s_start}, {inc}")

def emit_loader_prologue(a, L, nslots, nstages):
    lp = a.uid("Lpro")
    a(f"s_mov_b32 s{L['s_cnt']}, {nstages}")
    a.label(lp)
    emit_issue(a, L, range(nslots))
    emit_advance(a, L)
    a(f"s_sub_u32 s{L['s_cnt']}, s{L['s_cnt']}, 1")
    a(f"s_cmp_lg_u32 s{L['s_cnt']}, 0")
    a(f"s_cbranch_scc1 {lp}")

def emit_loader_main(a, L, nslots):
    S, NST = L["S"], L["NST"]
    lp = a.uid("Lld")
    a(f"s_mov_b32 s{L['s_cnt']}, {NST - S + 1}")
    a.label(lp)
    a(f"s_waitcnt vmcnt({(S - 2) * nslots})")
    iter_stamp(a, L['s_cnt'])
    a("s_barrier")
    emit_issue(a, L, range(nslots))
    emit_advance(a, L)
    a(f"s_sub_u32 s{L['s_cnt']}, s{L['s_cnt']}, 1")
    a(f"s_cmp_lg_u32 s{L['s_cnt']}, 0")
    a(f"s_cbranch_scc1 {lp}")
    for j in range(S - 1):
        a(f"s_waitcnt vmcnt({(S - 2 - j) * nslots})")
        a("s_barrier")
    a("s_barrier")

def interleave(a, mfmas, reads, lead=1, every=1):
    import common as _c
    q = list(reads)
    if _c.EXP.get("noread"): q = []
    if _c.EXP.get("nomfma"): mfmas = []
    for i, m in enumerate(mfmas):
        a(m)
        if i + 1 >= lead and q and ((i + 1 - lead) % every == 0):
            a(q.pop(0))
    for r in q:
        a(r)

def emit_consumer(a, C):
    NST, S = C["NST"], C["S"]
    subs = C["subs"]; spb = C["spb"]
    s_slot, s_cnt, s_dl = C["s_slot"], C["s_cnt"], C["s_delta"]
    def adv():
        a(f"s_mov_b32 s{s_dl}, {C['stage_bytes']}")
        a(f"s_add_u32 s{s_slot}, s{s_slot}, 1")
        a(f"s_cmp_eq_u32 s{s_slot}, {S}")
        a(f"s_cselect_b32 s{s_dl}, {(-(S - 1) * C['stage_bytes']) & 0xffffffff}, s{s_dl}")
        a(f"s_cselect_b32 s{s_slot}, 0, s{s_slot}")
        for v in C["addr"]:
            a(f"v_add_u32 v{v}, s{s_dl}, v{v}")
    def sub(sb, reads=True):
        if sb.get("bar"):
            a("s_barrier")
            if reads: adv()
        interleave(a, sb["mfma"], sb["reads_next"] if reads else [], lead=C.get("lead", 1), every=C.get("every", 1))
    a(f"s_mov_b32 s{s_slot}, 0")
    a(f"s_mov_b32 s{s_cnt}, {NST // spb}")
    a("s_barrier")
    for r in C["first_reads"]:
        a(r)
    a("s_waitcnt lgkmcnt(0)")
    lp = a.uid("Lc")
    a.label(lp)
    for j, sb in enumerate(subs):
        sub(sb)
        if j == len(subs) - 1:
            a(f"s_sub_u32 s{s_cnt}, s{s_cnt}, 1")
            a(f"s_cmp_lg_u32 s{s_cnt}, 0")
        a("s_waitcnt lgkmcnt(0)")
    a(f"s_cbranch_scc1 {lp}")
    if NST % spb:
        assert spb == 2 and NST % spb == 1
        for sb in subs:
            sub(sb, reads=False)
            if sb.get("bar"): break

STAMP = False
S_STAMP = 80
WS_STAMP = 64 << 20
def stamp(a, idx):
    import common as _c
    if not _c.STAMP: return
    a(f"{'s_memtime' if _c.STAMP == 2 else 's_memrealtime'} s[{S_STAMP+2*idx}:{S_STAMP+2*idx+1}]")
def stamp_init(a):
    import common as _c
    if not _c.STAMP: return
    for i in range(16): a(f"s_mov_b32 s{S_STAMP+i}, 0")
def stamp_flush(a, s_wave, vt, srd_tmp=96):
    import common as _c
    if not _c.STAMP: return
    a("s_waitcnt lgkmcnt(0) vmcnt(0)")
    make_srd(a, srd_tmp, P_WS, 256 * 8 * 64, WS_STAMP)
    a(f"s_lshl_b32 s3, s2, 3")
    a(f"s_add_u32 s3, s3, s{s_wave}")
    a(f"s_lshl_b32 s3, s3, 6")
    a(f"v_mov_b32 v{vt+2}, s3")
    a("s_mov_b64 exec, 1")
    for i in range(8):
        a(f"v_mov_b32 v{vt}, s{S_STAMP+2*i}")
        a(f"v_mov_b32 v{vt+1}, s{S_STAMP+2*i+1}")
        a(f"buffer_store_dwordx2 v[{vt}:{vt+1}], v{vt+2}, {srd(srd_tmp)}, 0 offen offset:{8*i}")
        a("s_nop 1")
    a("s_waitcnt vmcnt(0)")
    a("s_mov_b64 exec, -1")

V_ITS = 200
def iter_stamp(a, s_cnt):
    import common as _c
    if not _c.EXP.get("iterstamp"): return
    a("s_memtime s[98:99]")
    a("s_waitcnt lgkmcnt(0)")
    a(f"s_mov_b32 m0, s{s_cnt}")
    a(f"v_writelane_b32 v{V_ITS}, s98, m0")
def iter_flush(a, s_wave, vt):
    import common as _c
    if not _c.EXP.get("iterstamp"): return
    make_srd(a, 96, P_WS, 256 * 8 * 256, WS_STAMP + (1 << 20))
    a(f"s_lshl_b32 s3, s2, 3")
    a(f"s_add_u32 s3, s3, s{s_wave}")
    a(f"s_lshl_b32 s3, s3, 8")
    a(f"v_mbcnt_lo_u32_b32 v{vt}, -1, 0")
    a(f"v_mbcnt_hi_u32_b32 v{vt}, -1, v{vt}")
    a(f"v_lshlrev_b32 v{vt}, 2, v{vt}")
    a(f"buffer_store_dword v{V_ITS}, v{vt}, {srd(96)}, s3 offen")
    a("s_waitcnt vmcnt(0)")
```

```python
from common import *
import common as _c
from g3 import wave_ids, f2u

G1_STAGE = 49152
G1_S = 3
G1_NST = 10
XB = 18432
ARR = 72 * 64
SECB = 8 * ARR
VZ = 3 * SECB
OB = VZ + 512
SCALE = (20 ** -0.5) * 1.4426950408889634

def g1_loader_setup(a, R, variant):
    s_l, s_rt, s_hg, vl = R["s_l"], R["s_rt"], R["s_hg"], R["v_lane"]
    t0, t1, t2 = R["s_t0"], R["s_t1"], R["s_t2"]
    V = R["v_ld"]; vt0, vt1, vt2 = R["v_t0"], R["v_t1"], R["v_t2"]; vt3 = R["v_t3"]
    slots = []
    def xslot(m):
        a(f"s_add_u32 s{t0}, s{s_l}, {4*m}")
        a(f"s_lshl_b32 s{t0}, s{t0}, 3")
        a(f"s_lshl_b32 s{t1}, s{s_rt}, 7")
        a(f"s_add_i32 s{t0}, s{t0}, s{t1}")
        a(f"s_add_i32 s{t0}, s{t0}, -16")
        a(f"v_add_u32 v{vt2}, s{t0}, v{vt0}")
        a(f"v_mul_i32_i24 v{V+m}, 1280, v{vt2}")
        a(f"v_add_u32 v{V+m}, v{V+m}, v{vt1}")
        a(f"v_cmp_gt_i32 vcc, 0, v{vt2}")
        a(f"v_cndmask_b32 v{V+m}, v{V+m}, v{vt3}, vcc")
        slots.append(dict(voff=V + m, srd=R["srd_x"], soff=R["s_soff_h"], exec=(R["s_xmask"] if m == 0 else None), dep=False))
    def wslot(m):
        a(f"s_add_i32 s{t0}, s{s_l}, {4*m - 18}")
        a(f"s_lshl_b32 s{t0}, s{t0}, 6")
        a(f"v_add_u32 v{vt0}, s{t0}, v{vl}")
        a(f"v_mul_u32_u24 v{vt1}, 2185, v{vt0}")
        a(f"v_lshrrev_b32 v{vt1}, 16, v{vt1}")
        a(f"v_mul_u32_u24 v{vt2}, 30, v{vt1}")
        a(f"v_sub_u32 v{vt0}, v{vt0}, v{vt2}")
        a(f"v_and_b32 v{vt2}, 0x33, v{vt1}")
        a(f"v_bfe_u32 v{vt3}, v{vt1}, 2, 1")
        a(f"v_lshl_or_b32 v{vt2}, v{vt3}, 3, v{vt2}")
        a(f"v_bfe_u32 v{vt3}, v{vt1}, 3, 1")
        a(f"v_lshl_or_b32 v{vt2}, v{vt3}, 2, v{vt2}")
        a(f"v_mul_u32_u24 v{V+m}, 3840, v{vt2}")
        a(f"v_mul_u32_u24 v{vt1}, 26, v{vt0}")
        a(f"v_lshrrev_b32 v{vt1}, 8, v{vt1}")
        a(f"v_mul_u32_u24 v{vt2}, {1280 - 160}, v{vt1}")
        a(f"v_lshl_add_u32 v{vt2}, v{vt0}, 4, v{vt2}")
        a(f"s_mul_i32 s{t0}, s{s_hg}, 160")
        a(f"v_add3_u32 v{V+m}, v{V+m}, v{vt2}, s{t0}")
        slots.append(dict(voff=V + m, srd=R["srd_wq"], soff=R["s_soff_w"], dep=False))
    a(f"v_lshrrev_b32 v{vt0}, 3, v{vl}")
    a(f"s_and_b32 s{t0}, s{s_l}, 1")
    a(f"s_lshl_b32 s{t0}, s{t0}, 2")
    a(f"v_lshrrev_b32 v{vt1}, 1, v{vt0}")
    a(f"v_or_b32 v{vt1}, s{t0}, v{vt1}")
    a(f"v_and_b32 v{vt2}, 7, v{vl}")
    a(f"v_xor_b32 v{vt1}, v{vt1}, v{vt2}")
    a(f"v_lshlrev_b32 v{vt1}, 4, v{vt1}")
    a(f"v_mov_b32 v{vt3}, 0x7ff00000")
    nx = 5 if variant == 0 else 4
    for m in range(nx): xslot(m)
    for m in range(nx, 12): wslot(m)
    a(f"s_cmp_eq_u32 s{s_l}, 0")
    a(f"s_cselect_b32 s{R['s_xmask']}, 0xffffff00, -1")
    a(f"s_mov_b32 s{R['s_xmask']+1}, -1")
    L = dict(S=G1_S, NST=G1_NST, stage_bytes=G1_STAGE, slots=slots, m0_step=4096,
             advance=[(R["s_soff_h"], 128, 128 * G1_NST), (R["s_soff_w"], 64 * 3840, 64 * 3840 * G1_NST)],
             s_mb=R["s_mb"], s_mbbeg=R["s_mbbeg"], s_mbend=R["s_mbend"], s_cnt=R["s_cnt"])
    emit_loader_init(a, L, s_l, R["lds_base"], R.get("s_start"))
    return L, 12

def acc1(R, q, ts): return R["v_acc"] + (q * 9 + ts) * 4

def g1_consumer_setup(a, R):
    vl, w = R["v_lane"], R["s_wave"]
    vt0, vt1, vt2 = R["v_t0"], R["v_t1"], R["v_t2"]
    X, W = R["v_x"], R["v_w"]; t0 = R["s_t0"]
    a(f"v_and_b32 v{vt0}, 15, v{vl}")
    a(f"v_lshrrev_b32 v{vt1}, 4, v{vl}")
    a(f"v_lshrrev_b32 v{vt2}, 1, v{vt0}")
    a(f"v_xor_b32 v{X}, v{vt1}, v{vt2}")
    a(f"v_lshlrev_b32 v{X}, 4, v{X}")
    a(f"v_lshl_add_u32 v{X}, v{vt0}, 7, v{X}")
    if R["lds_base"]: a(f"v_add_u32 v{X}, {R['lds_base']}, v{X}")
    a(f"v_xor_b32 v{X+1}, 64, v{X}")
    a(f"v_lshrrev_b32 v{vt2}, 2, v{vt0}")
    a(f"v_and_b32 v{W}, 1, v{vt1}")
    a(f"v_lshl_add_u32 v{vt2}, v{W}, 2, v{vt2}")
    a(f"v_lshrrev_b32 v{W}, 1, v{vt1}")
    a(f"v_lshl_add_u32 v{vt2}, v{W}, 4, v{vt2}")
    a(f"v_mul_u32_u24 v{W}, 480, v{vt2}")
    a(f"v_and_b32 v{vt0}, 3, v{vt0}")
    a(f"v_lshl_add_u32 v{W}, v{vt0}, 3, v{W}")
    a(f"s_lshl_b32 s{t0}, s{w}, 7")
    a(f"s_add_u32 s{t0}, s{t0}, {XB + R['lds_base']}")
    a(f"v_add_u32 v{W}, s{t0}, v{W}")
    sk = a.uid("Lones")
    a(f"s_cmp_lg_u32 s{w}, 0")
    a(f"s_cbranch_scc1 {sk}")
    a(f"v_lshlrev_b32 v{vt0}, 2, v{vl}")
    a(f"v_mov_b32 v{vt1}, 0x3f803f80")
    a("s_mov_b64 exec, 0xffffffff")
    for sl in range(G1_S):
        a(f"v_add_u32 v{vt2}, {R['lds_base'] + sl * G1_STAGE}, v{vt0}")
        a(f"ds_write_b32 v{vt2}, v{vt1}")
    a("s_mov_b64 exec, -1")
    a("s_waitcnt lgkmcnt(0)")
    a.label(sk)
    for q in range(4):
        for ts in range(9):
            k = acc1(R, q, ts)
            a(f"v_mov_b64 v[{k}:{k+1}], 0")
            a(f"v_mov_b64 v[{k+2}:{k+3}], 0")

def g1_stats_load(a, R):
    vl = R["v_lane"]; ST = R["v_st"]; vt0 = R["v_t0"]; t0 = R["s_t0"]
    a(f"s_lshl_b32 s{t0}, s{R['s_rt']}, 7")
    a(f"s_add_i32 s{t0}, s{t0}, -16")
    a(f"v_and_b32 v{vt0}, 15, v{vl}")
    a(f"v_add_u32 v{vt0}, s{t0}, v{vt0}")
    a(f"v_lshlrev_b32 v{vt0}, 3, v{vt0}")
    for ts in range(9):
        a(f"buffer_load_dwordx2 v[{ST+2*ts}:{ST+2*ts+1}], v{vt0}, {srd(R['srd_st'])}, 0 offen {R.get('aux_h','')}")
        if ts < 8: a(f"v_add_u32 v{vt0}, 128, v{vt0}")

def g1_consumer(a, R):
    F = R["a_frag"]; X, W = R["v_x"], R["v_w"]
    def fa(s, q): return F + s * 16 + q * 4
    def fb(ts): return F + 32 + ts * 4
    def rA(s, k):
        return [f"ds_read_b64_tr_b16 {ar(fa(s,q)+2*rho,2)}, v{W} offset:{k*15360 + rho*3840 + q*32}" for q in range(4) for rho in range(2)]
    def rB(k, tss):
        return [f"ds_read_b128 {ar(fb(ts),4)}, v{X+k} offset:{ts*2048}" for ts in tss]
    def mf(s, tss):
        return [f"v_mfma_f32_16x16x32_bf16 {vr(acc1(R,q,ts),4)}, {ar(fa(s,q),4)}, {ar(fb(ts),4)}, {vr(acc1(R,q,ts),4)}"
                for ts in tss for q in range(4)]
    lo, hi = range(0, 5), range(5, 9)
    def mix(A, B):
        return [B[0]] + A + B[1:]
    C = dict(NST=G1_NST, S=G1_S, stage_bytes=G1_STAGE, s_slot=R["s_slot"], s_cnt=R["s_cnt"], s_delta=R["s_delta"], spb=1,
             addr=[X, X + 1, W], first_reads=mix(rA(0, 0), rB(0, lo)),
             subs=[dict(mfma=mf(0, lo), reads_next=rB(0, hi)),
                   dict(mfma=mf(0, hi), reads_next=mix(rA(1, 1), rB(1, lo))),
                   dict(mfma=mf(1, lo), reads_next=rB(1, hi)),
                   dict(mfma=mf(1, hi), reads_next=mix(rA(0, 0), rB(0, lo)), bar=True)])
    emit_consumer(a, C)

def g1_qkv_write(a, R):
    vl, w = R["v_lane"], R["s_wave"]; ST = R["v_st"]; T = R["v_tmp"]
    vt0, vt1, vt2, vt3 = R["v_t0"], R["v_t1"], R["v_t2"], R["v_t3"]; t0, t1 = R["s_t0"], R["s_t1"]
    a("s_waitcnt vmcnt(0) lgkmcnt(0)")
    for ts in range(9):
        a(f"v_xor_b32 v{ST+2*ts}, 0x80000000, v{ST+2*ts}")
    a(f"v_and_b32 v{vt0}, 15, v{vl}")
    a(f"v_lshrrev_b32 v{vt1}, 4, v{vl}")
    a(f"v_and_b32 v{vt2}, 1, v{vt0}")
    a(f"v_mul_u32_u24 v{T+8}, {ARR}, v{vt2}")
    a(f"v_lshrrev_b32 v{vt0}, 1, v{vt0}")
    a(f"v_lshl_add_u32 v{T+8}, v{vt0}, 6, v{T+8}")
    a(f"v_lshlrev_b32 v{T+9}, 1, v{vt2}")
    CS, W0 = T, T + 4
    AE, AO = T + 10, T + 11
    for q in range(4):
        sk = None
        if q == 3:
            sk = a.uid("Lq3")
            a(f"s_cmp_eq_u32 s{w}, 3")
            a(f"s_cbranch_scc1 {sk}")
        a(f"s_lshl_b32 s{t0}, s{w}, 4")
        a(f"s_add_u32 s{t0}, s{t0}, {4*q}")
        a(f"v_add_u32 v{vt0}, s{t0}, v{vt1}")
        a(f"v_mul_u32_u24 v{vt2}, 13, v{vt0}")
        a(f"v_lshrrev_b32 v{vt2}, 8, v{vt2}")
        a(f"v_mul_u32_u24 v{AE}, {SECB}, v{vt2}")
        a(f"v_mul_u32_u24 v{vt2}, 20, v{vt2}")
        a(f"v_sub_u32 v{vt0}, v{vt0}, v{vt2}")
        a(f"v_mul_u32_u24 v{vt2}, 52, v{vt0}")
        a(f"v_lshrrev_b32 v{vt2}, 8, v{vt2}")
        a(f"v_mul_u32_u24 v{vt3}, {2*ARR}, v{vt2}")
        a(f"v_add3_u32 v{AE}, v{AE}, v{vt3}, v{T+8}")
        a(f"v_mul_u32_u24 v{vt2}, 5, v{vt2}")
        a(f"v_sub_u32 v{vt0}, v{vt0}, v{vt2}")
        a(f"v_lshrrev_b32 v{vt2}, 1, v{vt0}")
        a(f"v_xor_b32 v{vt2}, v{vt2}, v{T+9}")
        a(f"v_lshl_add_u32 v{AE}, v{vt2}, 4, v{AE}")
        a(f"v_and_b32 v{vt0}, 1, v{vt0}")
        a(f"v_lshl_add_u32 v{AE}, v{vt0}, 3, v{AE}")
        if R["lds_base"]: a(f"v_add_u32 v{AE}, {R['lds_base']}, v{AE}")
        a(f"v_xor_b32 v{AO}, 32, v{AE}")
        k0 = acc1(R, q, 0)
        for r in range(4):
            a(f"v_mov_b32_dpp v{CS+r}, v{k0+r} row_newbcast:0 row_mask:0xf bank_mask:0xf")
        for ts in range(9):
            k = acc1(R, q, ts); st = ST + 2 * ts
            wk = W0 + 2 * (ts & 1)
            a(f"v_pk_fma_f32 v[{k}:{k+1}], v[{CS}:{CS+1}], v[{st}:{st+1}], v[{k}:{k+1}] op_sel_hi:[1,0,1]")
            a(f"v_pk_fma_f32 v[{k+2}:{k+3}], v[{CS+2}:{CS+3}], v[{st}:{st+1}], v[{k+2}:{k+3}] op_sel_hi:[1,0,1]")
            a(f"v_pk_mul_f32 v[{k}:{k+1}], v[{k}:{k+1}], v[{st}:{st+1}] op_sel:[0,1] op_sel_hi:[1,1]")
            a(f"v_pk_mul_f32 v[{k+2}:{k+3}], v[{k+2}:{k+3}], v[{st}:{st+1}] op_sel:[0,1] op_sel_hi:[1,1]")
            a(f"v_cvt_pk_bf16_f32 v{wk}, v{k}, v{k+1}")
            a(f"v_cvt_pk_bf16_f32 v{wk+1}, v{k+2}, v{k+3}")
            a(f"ds_write_b64 v{AE if ts % 2 == 0 else AO}, v[{wk}:{wk+1}] offset:{ts*512}")
        if sk: a.label(sk)
    a("s_waitcnt lgkmcnt(0)")

def g1_pad_zero(a, R):
    vl = R["v_lane"]; vt0, vt1, vt2 = R["v_t0"], R["v_t1"], R["v_t2"]; Z = R["v_z"]; t0 = R["s_t0"]
    for r in range(4): a(f"v_mov_b32 v{Z+r}, 0")
    a(f"s_lshl_b32 s{t0}, s{R['s_l']}, 6")
    a(f"v_add_u32 v{vt0}, s{t0}, v{vl}")
    a(f"v_bfe_u32 v{vt1}, v{vt0}, 3, 1")
    a(f"v_lshlrev_b32 v{vt1}, 5, v{vt1}")
    a(f"v_lshlrev_b32 v{vt0}, 6, v{vt0}")
    if R["lds_base"]: a(f"v_add_u32 v{vt0}, {R['lds_base']}, v{vt0}")
    a(f"v_xor_b32 v{vt2}, 32, v{vt1}")
    a(f"v_add_u32 v{vt2}, v{vt2}, v{vt0}")
    a(f"v_xor_b32 v{vt1}, 48, v{vt1}")
    a(f"v_add_u32 v{vt1}, v{vt1}, v{vt0}")
    sk = a.uid("Lpz")
    for m in range(5):
        if m == 4:
            a(f"s_cmp_ge_u32 s{R['s_l']}, 2")
            a(f"s_cbranch_scc1 {sk}")
            a(f"v_add_u32 v{vt2}, 65536, v{vt2}")
            a(f"v_add_u32 v{vt1}, 65536, v{vt1}")
        mo = (m % 4) * 16384
        a(f"ds_write_b64 v{vt2}, v[{Z}:{Z+1}] offset:{mo + 8}")
        a(f"ds_write_b128 v{vt1}, v[{Z}:{Z+3}] offset:{mo}")
    a.label(sk)
    sk2 = a.uid("Lpz")
    a(f"s_cmp_lg_u32 s{R['s_l']}, 3")
    a(f"s_cbranch_scc1 {sk2}")
    a(f"v_lshlrev_b32 v{vt0}, 3, v{vl}")
    a(f"v_add_u32 v{vt0}, {VZ + R['lds_base']}, v{vt0}")
    a(f"ds_write_b64 v{vt0}, v[{Z}:{Z+1}]")
    a.label(sk2)
    a("s_waitcnt lgkmcnt(0)")

def g1_attention(a, R):
    vl, w = R["v_lane"], R["s_wave"]; t0, t1, t2 = R["s_t0"], R["s_t1"], R["s_t2"]
    B = R["v_att"]
    vi, vg, vq, vk, vv, vo0, vo1, t = B, B + 1, B + 2, B + 3, B + 4, B + 5, B + 6, B + 7
    QF, KF0, KF1, VF = B + 12, B + 16, B + 20, B + 24
    S, PF, O = B + 32, B + 40, B + 44
    mx, tm = B + 52, B + 53
    M = R["s_mask"]
    MW = R["s_maskw"]
    a(f"v_and_b32 v{vi}, 15, v{vl}")
    a(f"v_lshrrev_b32 v{vg}, 4, v{vl}")
    a(f"s_and_b32 s{t0}, s{w}, 1")
    a(f"s_mul_i32 s{t1}, s{w}, {ARR}")
    a(f"s_add_u32 s{t1}, s{t1}, {R['lds_base']}")
    a(f"v_lshrrev_b32 v{t}, 3, v{vi}")
    a(f"v_add_u32 v{t}, s{t0}, v{t}")
    a(f"v_and_b32 v{t}, 1, v{t}")
    a(f"v_lshlrev_b32 v{t}, 1, v{t}")
    a(f"v_xor_b32 v{t+1}, v{t}, v{vg}")
    a(f"v_lshlrev_b32 v{vk}, 4, v{t+1}")
    a(f"v_lshl_add_u32 v{vk}, v{vi}, 6, v{vk}")
    a(f"v_add_u32 v{vk}, s{t1}, v{vk}")
    a(f"v_xor_b32 v{vq}, 32, v{vk}")
    a(f"v_add_u32 v{vq}, {8*64}, v{vq}")
    a(f"v_add_u32 v{vk}, {SECB}, v{vk}")
    a(f"v_lshrrev_b32 v{t}, 1, v{vg}")
    a(f"v_add_u32 v{t}, s{t0}, v{t}")
    a(f"v_and_b32 v{t}, 1, v{t}")
    a(f"v_lshlrev_b32 v{t}, 5, v{t}")
    a(f"v_lshrrev_b32 v{t+1}, 2, v{vi}")
    a(f"v_lshl_add_u32 v{t+1}, v{vg}, 2, v{t+1}")
    a(f"v_lshl_add_u32 v{vv}, v{t+1}, 6, v{t}")
    a(f"v_and_b32 v{t+1}, 3, v{vi}")
    a(f"v_lshl_add_u32 v{vv}, v{t+1}, 3, v{vv}")
    a(f"s_add_u32 s{t2}, s{t1}, {2*SECB}")
    a(f"v_add_u32 v{vv}, s{t2}, v{vv}")
    a(f"v_xor_b32 v{t+4}, 32, v{vv}")
    a(f"s_lshr_b32 s{t2}, s{w}, 1")
    a(f"s_mul_i32 s{t2}, s{t2}, 5")
    a(f"v_lshlrev_b32 v{t}, 1, v{vi}")
    a(f"v_add_u32 v{t}, s{t0}, v{t}")
    a(f"v_and_b32 v{t}, 15, v{t}")
    a(f"v_lshrrev_b32 v{t+1}, 3, v{vi}")
    a(f"v_mul_u32_u24 v{t+1}, 320, v{t+1}")
    a(f"v_add_u32 v{t}, v{t}, v{t+1}")
    for dst, k4src in ((vo0, "g"), (vo1, "4")):
        if k4src == "g": a(f"v_add_u32 v{t+1}, s{t2}, v{vg}")
        else:
            a(f"s_add_u32 s{t2}, s{t2}, 4")
            a(f"v_mov_b32 v{t+1}, s{t2}")
        a(f"v_lshrrev_b32 v{t+2}, 2, v{t+1}")
        a(f"v_and_b32 v{t+1}, 3, v{t+1}")
        a(f"v_lshlrev_b32 v{t+1}, 4, v{t+1}")
        a(f"v_lshl_add_u32 v{t+1}, v{t+2}, 6, v{t+1}")
        a(f"v_add_u32 v{dst}, v{t}, v{t+1}")
        a(f"v_lshlrev_b32 v{dst}, 3, v{dst}")
        a(f"v_add_u32 v{dst}, {OB + R['lds_base']}, v{dst}")
    a(f"v_lshlrev_b32 v{t}, 2, v{vg}")
    a(f"v_sub_u32 v{t}, v{t}, v{vi}")
    for tt in range(2):
        for r in range(4):
            a(f"v_add_u32 v{t+1}, {16*tt + r - 1}, v{t}")
            a(f"v_cmp_gt_u32 s[{M+2*(4*tt+r)}:{M+2*(4*tt+r)+1}], 8, v{t+1}")
    a("s_nop 3")
    a(f"s_cmp_eq_u32 s{R['s_rt']}, 0")
    a(f"s_cselect_b32 s{t0}, 0, -1")
    for r in range(4):
        a(f"s_and_b32 s{MW+2*r}, s{M+2*r}, s{t0}")
        a(f"s_mov_b32 s{MW+2*r+1}, s{M+2*r+1}")
    a(f"v_mov_b32 v{t+2}, 0xff800000")
    a(f"s_mov_b32 s{t1}, {hex(f2u(SCALE))}")
    a(f"s_mov_b32 s{R['s_cnt']}, 4")
    lp = a.uid("Latt")
    a.label(lp)
    a(f"ds_read_b128 v[{QF}:{QF+3}], v{vq}")
    a(f"ds_read_b128 v[{KF0}:{KF0+3}], v{vk}")
    a(f"ds_read_b128 v[{KF1}:{KF1+3}], v{vk} offset:1024")
    for u, av in ((0, vv), (1, t + 4)):
        for rho in range(2):
            a(f"ds_read_b64_tr_b16 v[{VF+4*u+2*rho}:{VF+4*u+2*rho+1}], v{av} offset:{rho*1024}")
    a("s_waitcnt lgkmcnt(4)")
    a(f"v_mfma_f32_16x16x32_bf16 v[{S}:{S+3}], v[{KF0}:{KF0+3}], v[{QF}:{QF+3}], 0")
    a(f"v_mfma_f32_16x16x32_bf16 v[{S+4}:{S+7}], v[{KF1}:{KF1+3}], v[{QF}:{QF+3}], 0")
    for v in (vq, vk, vv, t + 4):
        a(f"v_add_u32 v{v}, 1024, v{v}")
    for r in range(4):
        a(f"v_cndmask_b32 v{S+r}, v{t+2}, v{S+r}, s[{MW+2*r}:{MW+2*r+1}]")
    for r in range(4):
        a(f"v_cndmask_b32 v{S+4+r}, v{t+2}, v{S+4+r}, s[{M+2*(4+r)}:{M+2*(4+r)+1}]")
    a(f"v_max3_f32 v{mx}, v{S}, v{S+1}, v{S+2}")
    a(f"v_max3_f32 v{mx}, v{mx}, v{S+3}, v{S+4}")
    a(f"v_max3_f32 v{mx}, v{mx}, v{S+5}, v{S+6}")
    a(f"v_max_f32 v{mx}, v{mx}, v{S+7}")
    for sw in ("v_permlane16_swap_b32", "v_permlane32_swap_b32"):
        a(f"v_mov_b32 v{tm}, v{mx}")
        a(f"{sw} v{mx}, v{tm}")
        a(f"v_max_f32 v{mx}, v{mx}, v{tm}")
    a(f"v_mul_f32 v{mx}, s{t1}, v{mx}")
    for r in range(8):
        a(f"v_fma_f32 v{S+r}, v{S+r}, s{t1}, -v{mx}")
    for r in range(8):
        a(f"v_exp_f32 v{S+r}, v{S+r}")
    a(f"v_pk_add_f32 v[{O}:{O+1}], v[{S}:{S+1}], v[{S+2}:{S+3}]")
    a(f"v_pk_add_f32 v[{O+2}:{O+3}], v[{S+4}:{S+5}], v[{S+6}:{S+7}]")
    a(f"v_pk_add_f32 v[{O}:{O+1}], v[{O}:{O+1}], v[{O+2}:{O+3}]")
    a(f"v_add_f32 v{mx}, v{O}, v{O+1}")
    for sw in ("v_permlane16_swap_b32", "v_permlane32_swap_b32"):
        a(f"v_mov_b32 v{tm}, v{mx}")
        a(f"{sw} v{mx}, v{tm}")
        a(f"v_add_f32 v{mx}, v{mx}, v{tm}")
    a(f"v_rcp_f32 v{mx}, v{mx}")
    a("s_nop 0")
    for r in range(0, 8, 2):
        a(f"v_pk_mul_f32 v[{S+r}:{S+r+1}], v[{S+r}:{S+r+1}], v[{mx}:{mx+1}] op_sel_hi:[1,0]")
    for r in range(4):
        a(f"v_cvt_pk_bf16_f32 v{PF+r}, v{S+2*r}, v{S+2*r+1}")
    a("s_waitcnt lgkmcnt(0)")
    a(f"v_mfma_f32_16x16x32_bf16 v[{O}:{O+3}], v[{VF}:{VF+3}], v[{PF}:{PF+3}], 0")
    a(f"v_mfma_f32_16x16x32_bf16 v[{O+4}:{O+7}], v[{VF+4}:{VF+7}], v[{PF}:{PF+3}], 0")
    for r in range(4):
        a(f"s_mov_b64 s[{MW+2*r}:{MW+2*r+1}], s[{M+2*r}:{M+2*r+1}]")
    a(f"s_sub_u32 s{R['s_cnt']}, s{R['s_cnt']}, 1")
    a(f"v_cvt_pk_bf16_f32 v{PF}, v{O}, v{O+1}")
    a(f"v_cvt_pk_bf16_f32 v{PF+1}, v{O+2}, v{O+3}")
    a(f"v_cvt_pk_bf16_f32 v{PF+2}, v{O+4}, v{O+5}")
    a(f"v_cvt_pk_bf16_f32 v{PF+3}, v{O+6}, v{O+7}")
    a(f"ds_write_b64 v{vo0}, v[{PF}:{PF+1}]")
    a("s_mov_b64 exec, 0xffff")
    a(f"ds_write_b64 v{vo1}, v[{PF+2}:{PF+3}]")
    a("s_mov_b64 exec, -1")
    a(f"v_add_u32 v{vo0}, 5120, v{vo0}")
    a(f"v_add_u32 v{vo1}, 5120, v{vo1}")
    a(f"s_cmp_lg_u32 s{R['s_cnt']}, 0")
    a(f"s_cbranch_scc1 {lp}")
    a("s_waitcnt lgkmcnt(0)")

def g1_o_store(a, R):
    B = R["v_att"]; t0, t1 = R["s_t0"], R["s_t1"]
    c, g, l = B, B + 1, B + 2; D = B + 4
    a(f"s_lshl_b32 s{t0}, s{R['s_rt']}, 3")
    a(f"s_mul_i32 s{t0}, s{t0}, {40*512}")
    a(f"s_mul_i32 s{t1}, s{R['s_hg']}, {5*512}")
    a(f"s_add_u32 s{t0}, s{t0}, s{t1}")
    sk = a.uid("Los")
    for m in range(3):
        if m == 2:
            a(f"s_cmp_ge_u32 s{R['s_wave']}, 4")
            a(f"s_cbranch_scc1 {sk}")
        a(f"v_and_b32 v{c}, 0x3ff, v0")
        if m: a(f"v_add_u32 v{c}, {512*m}, v{c}")
        a(f"v_lshlrev_b32 v{l}, 4, v{c}")
        a(f"v_add_u32 v{l}, {OB + R['lds_base']}, v{l}")
        a(f"ds_read_b128 v[{D+4*m}:{D+4*m+3}], v{l}")
        a(f"v_mul_u32_u24 v{g}, 3277, v{c}")
        a(f"v_lshrrev_b32 v{g}, 19, v{g}")
        a(f"v_mul_u32_u24 v{l}, 160, v{g}")
        a(f"v_sub_u32 v{c}, v{c}, v{l}")
        a(f"v_mul_u32_u24 v{g}, {40*512}, v{g}")
        a(f"v_lshl_add_u32 v{B+3}, v{c}, 4, v{g}")
        a("s_waitcnt lgkmcnt(0)")
        a(f"buffer_store_dwordx4 v[{D+4*m}:{D+4*m+3}], v{B+3}, {srd(R['srd_o'])}, s{t0} offen {R.get('aux_st','')}")
    a.label(sk)

def g1_map(a, R, s_id):
    t0, t1 = R['s_t0'], R['s_t1']
    a(f"s_and_b32 s{t0}, s{s_id}, 7")
    a(f"s_lshr_b32 s{t1}, s{s_id}, 3")
    a(f"s_and_b32 s{R['s_hg']}, s{t0}, 1")
    a(f"s_lshl_b32 s{R['s_hg']}, s{R['s_hg']}, 2")
    a(f"s_and_b32 s{R['s_t2']}, s{t1}, 3")
    a(f"s_add_u32 s{R['s_hg']}, s{R['s_hg']}, s{R['s_t2']}")
    a(f"s_lshr_b32 s{R['s_rt']}, s{t0}, 1")
    a(f"s_lshl_b32 s{R['s_rt']}, s{R['s_rt']}, 2")
    a(f"s_lshr_b32 s{t1}, s{t1}, 2")
    a(f"s_add_u32 s{R['s_rt']}, s{R['s_rt']}, s{t1}")
    if R.get("s_start") is not None:
        a(f"s_lshl_b32 s{R['s_t2']}, s{R['s_t2']}, 1")
        a(f"s_mul_i32 s{t1}, s{t1}, 3")
        a(f"s_add_u32 s{t1}, s{t1}, s{R['s_t2']}")
        a(f"s_cmp_ge_u32 s{t1}, 10")
        a(f"s_cselect_b32 s{t0}, 10, 0")
        a(f"s_sub_u32 s{R['s_start']}, s{t1}, s{t0}")
        if _c.EXP.get("norot"): a(f"s_mov_b32 s{R['s_start']}, 0")

def regs_g1():
    return dict(
        s_wave=40, s_l=41, s_hg=42, s_rt=43, s_t0=44, s_t1=45, s_t2=46, s_cnt=47, s_slot=48,
        s_soff_h=49, s_soff_w=50, s_mb=51, s_mbbeg=52, s_mbend=53, s_delta=54, s_start=38, s_xmask=56,
        srd_x=60, srd_wq=64, srd_st=68, srd_o=72, s_mask=6 - 6 + 4, s_maskw=0,
        v_lane=1, v_t0=2, v_t1=3, v_t2=4, v_t3=5, v_x=6, v_w=8, v_st=10, v_tmp=28, v_z=28, v_ld=10, v_acc=40, v_att=44,
        a_frag=0, lds_base=0)

G1_LDS = G1_S * G1_STAGE + 256

def emit_g1_body(a, R, name):
    a(f"s_cmp_ge_u32 s{R['s_wave']}, 4")
    a(f"s_cbranch_scc1 {name}_loader")
    g1_stats_load(a, R)
    g1_consumer_setup(a, R)
    stamp(a, 1)
    g1_consumer(a, R)
    stamp(a, 2)
    g1_qkv_write(a, R)
    stamp(a, 3)
    a(f"s_branch {name}_att")
    a.label(f"{name}_loader")
    a(f"s_sub_u32 s{R['s_l']}, s{R['s_wave']}, 4")
    a(f"s_cmp_ge_u32 s{R['s_l']}, 2")
    a(f"s_cbranch_scc1 {name}_loaderB")
    for variant in range(2):
        if variant == 1: a.label(f"{name}_loaderB")
        L, n = g1_loader_setup(a, R, variant)
        emit_loader_prologue(a, L, n, G1_S - 1)
        emit_loader_main(a, L, n)
        if variant == 0: a(f"s_branch {name}_pad")
    a.label(f"{name}_pad")
    g1_pad_zero(a, R)
    a.label(f"{name}_att")
    a("s_barrier")
    if _c.EXP.get("dumplds"):
        make_srd(a, 96, P_WS, 128 * 131072, 128 << 20)
        a("s_lshl_b32 s3, s2, 17")
        a("v_and_b32 v44, 0x3ff, v0")
        a("v_lshlrev_b32 v44, 4, v44")
        for m in range(16):
            a("ds_read_b128 v[48:51], v44")
            a("s_waitcnt lgkmcnt(0)")
            a("buffer_store_dwordx4 v[48:51], v44, s[96:99], s3 offen")
            a("v_add_u32 v44, 8192, v44")
            a("s_nop 1")
        a("s_waitcnt vmcnt(0)")
        a("s_barrier")
    g1_attention(a, R)
    a("s_barrier")
    stamp(a, 4)
    g1_o_store(a, R)

def emit_g1_kernel(a, name="g1_kernel"):
    R = regs_g1()
    R["s_mask"] = 4
    R["s_maskw"] = 20
    kernel_header(a, name)
    a(f"s_cmp_ge_u32 s2, 128")
    a(f"s_cbranch_scc1 {name}_end")
    stamp_init(a)
    stamp(a, 0)
    load_kernargs(a)
    wave_ids(a, R)
    g1_map(a, R, 2)
    a("s_waitcnt lgkmcnt(0)")
    make_srd(a, R["srd_x"], P_X, X_BYTES)
    make_srd(a, R["srd_wq"], P_WQKV, WQKV_BYTES)
    make_srd(a, R["srd_st"], P_WS, WS_ST_BYTES, WS_ST)
    make_srd(a, R["srd_o"], P_WS, WS_O_BYTES, WS_O)
    emit_g1_body(a, R, name)
    a("s_waitcnt vmcnt(0)")
    stamp(a, 5)
    stamp_flush(a, R['s_wave'], 2)
    a.label(f"{name}_end")
    a("s_endpgm")
    return kernel_desc(name, 256, 102, 184)
```

```python
from common import *
import common as _c
from g3 import emit_kreduce, wave_ids

G2_STAGE = 26 * 1024
G2_S = 6
G2_NST = 10

def g2_slots(variant):
    return [True] * 4 + [False] * (3 if variant == 0 else 2)

def g2_loader_setup(a, R, variant):
    kinds = g2_slots(variant)
    s_l, s_dj, s_rt, vl = R["s_l"], R["s_dj"], R["s_rt"], R["v_lane"]
    t0, t1, t2 = R["s_t0"], R["s_t1"], R["s_t2"]
    V = R["v_ld"]; vt0, vt1, vt2 = R["v_t0"], R["v_t1"], R["v_t2"]
    a(f"s_lshl_b32 s{t2}, s{s_rt}, 3")
    a(f"s_lshr_b32 s{t0}, s{s_l}, 1")
    a(f"s_add_u32 s{t2}, s{t2}, s{t0}")
    a(f"s_mul_i32 s{t2}, s{t2}, {40 * 512}")
    a(f"s_and_b32 s{t0}, s{s_l}, 1")
    a(f"s_lshl_b32 s{t0}, s{t0}, 10")
    a(f"s_add_u32 s{t2}, s{t2}, s{t0}")
    a(f"v_lshl_add_u32 v{vt0}, v{vl}, 4, s{t2}")
    slots = []
    for m, is_o in enumerate(kinds):
        if is_o:
            a(f"v_add_u32 v{V+m}, {m * 2 * 40 * 512}, v{vt0}")
            slots.append(dict(voff=V + m, srd=R["srd_o"], soff=R["s_soff_h"], aux=R.get("aux_h", ""), dep=True))
        else:
            a(f"s_add_i32 s{t0}, s{s_l}, {4*m - 16}")
            a(f"s_lshl_b32 s{t0}, s{t0}, 6")
            a(f"v_add_u32 v{vt1}, s{t0}, v{vl}")
            a(f"v_mul_u32_u24 v{vt2}, 6554, v{vt1}")
            a(f"v_lshrrev_b32 v{vt2}, 16, v{vt2}")
            a(f"v_mul_u32_u24 v{V+m}, 10, v{vt2}")
            a(f"v_sub_u32 v{vt1}, v{vt1}, v{V+m}")
            a(f"v_mul_u32_u24 v{vt2}, 1280, v{vt2}")
            a(f"v_lshl_add_u32 v{V+m}, v{vt1}, 4, v{vt2}")
            a(f"s_mul_i32 s{t0}, s{s_dj}, 160")
            a(f"v_add_u32 v{V+m}, s{t0}, v{V+m}")
            slots.append(dict(voff=V + m, srd=R["srd_wo"], soff=R["s_soff_w"], dep=False))
    L = dict(S=G2_S, NST=G2_NST, stage_bytes=G2_STAGE, slots=slots, m0_step=4096,
             advance=[(R["s_soff_h"], 2048, 2048 * G2_NST), (R["s_soff_w"], 64 * 1280, 64 * 1280 * G2_NST)],
             s_mb=R["s_mb"], s_mbbeg=R["s_mbbeg"], s_mbend=R["s_mbend"], s_cnt=R["s_cnt"])
    emit_loader_init(a, L, s_l, R["lds_base"], R.get("s_start"))
    return L, len(kinds)

def acc2(R, td, q): return R["v_acc"] + (q * 5 + td) * 4

def g2_consumer_setup(a, R):
    vl, w = R["v_lane"], R["s_wave"]
    vt0, vt1, vt2 = R["v_t0"], R["v_t1"], R["v_t2"]
    ob, W = R["v_hb"], R["v_w"]; t0, t1 = R["s_t0"], R["s_t1"]
    a(f"s_lshr_b32 s{t1}, s{w}, 1")
    a(f"s_and_b32 s{t0}, s{w}, 1")
    a(f"s_lshl_b32 s{t0}, s{t0}, 2")
    a(f"s_lshl_b32 s{R['s_t2']}, s{t1}, 1")
    a(f"s_or_b32 s{R['s_T']}, s{t0}, s{R['s_t2']}")
    a(f"s_lshl_b32 s{t0}, s{t1}, 10")
    a(f"s_add_u32 s{t0}, s{t0}, {R['lds_base']}")
    a(f"v_lshl_add_u32 v{vt0}, v{vl}, 3, s{t0}")
    a(f"s_lshl_b32 s{t0}, s{R['s_T']}, 11")
    a(f"v_add_u32 v{ob}, s{t0}, v{vt0}")
    a(f"s_xor_b32 s{t0}, s{R['s_T']}, 2")
    a(f"s_lshl_b32 s{t0}, s{t0}, 11")
    a(f"v_add_u32 v{ob+1}, s{t0}, v{vt0}")
    a(f"v_and_b32 v{vt0}, 15, v{vl}")
    a(f"v_lshrrev_b32 v{vt1}, 4, v{vl}")
    a(f"v_lshrrev_b32 v{vt2}, 2, v{vt0}")
    a(f"v_lshl_add_u32 v{vt1}, v{vt1}, 2, v{vt2}")
    a(f"v_mul_u32_u24 v{W}, 160, v{vt1}")
    a(f"v_and_b32 v{vt0}, 3, v{vt0}")
    a(f"v_lshl_add_u32 v{W}, v{vt0}, 3, v{W}")
    a(f"s_mul_i32 s{t0}, s{t1}, {32*160}")
    a(f"s_add_u32 s{t0}, s{t0}, {16*1024 + R['lds_base']}")
    a(f"v_add_u32 v{W}, s{t0}, v{W}")

def g2_resid_load(a, R):
    vl = R["v_lane"]; X = R["v_x"]; vt0, vt1 = R["v_t0"], R["v_t1"]; t0, t1 = R["s_t0"], R["s_t1"]
    a(f"s_lshl_b32 s{t0}, s{R['s_rt']}, 3")
    a(f"s_add_u32 s{t0}, s{t0}, s{R['s_T']}")
    a(f"s_lshl_b32 s{t0}, s{t0}, 4")
    a(f"v_and_b32 v{vt0}, 15, v{vl}")
    a(f"v_add_u32 v{vt0}, s{t0}, v{vt0}")
    a(f"v_lshlrev_b32 v{vt1}, 1, v{vt0}")
    for q in range(2):
        a(f"buffer_load_ushort v{R['v_b2']+q}, v{vt1}, {srd(R['srd_b2'])}, 0 offen offset:{q*32}")
    a(f"v_mul_u32_u24 v{vt0}, 1280, v{vt0}")
    a(f"v_lshrrev_b32 v{vt1}, 4, v{vl}")
    a(f"v_lshl_add_u32 v{vt0}, v{vt1}, 3, v{vt0}")
    a(f"s_mul_i32 s{t1}, s{R['s_dj']}, 160")
    for q in range(2):
        for td in range(5):
            a(f"buffer_load_dwordx2 v[{X+(q*5+td)*2}:{X+(q*5+td)*2+1}], v{vt0}, {srd(R['srd_x'])}, s{t1} offen offset:{td*32}")
        if q == 0: a(f"s_add_u32 s{t1}, s{t1}, {16*1280}")

def g2_acc_init(a, R):
    X = R["v_x"]
    for q in range(2, 4):
        for td in range(5):
            for r in range(0, 4, 2):
                a(f"v_mov_b64 v[{acc2(R,td,q)+r}:{acc2(R,td,q)+r+1}], 0")
    a("s_waitcnt vmcnt(0)")
    for q in range(2):
        b = R["v_b2"] + q
        a(f"v_lshlrev_b32 v{b}, 16, v{b}")
    for q in range(2):
        b = R["v_b2"] + q
        for td in range(5):
            x = X + (q * 5 + td) * 2; k = acc2(R, td, q)
            a(f"v_lshlrev_b32 v{k}, 16, v{x}")
            a(f"v_and_b32 v{k+1}, 0xffff0000, v{x}")
            a(f"v_lshlrev_b32 v{k+2}, 16, v{x+1}")
            a(f"v_and_b32 v{k+3}, 0xffff0000, v{x+1}")
            for r in range(4):
                a(f"v_add_f32 v{k+r}, v{k+r}, v{b}")

def g2_consumer(a, R):
    F = R["a_frag"]; ob, W = R["v_hb"], R["v_w"]
    def fa(s, td): return F + s * 36 + td * 4
    def fb(s, q): return F + s * 36 + 20 + q * 4
    def reads(s):
        rd = []
        def rb(q):
            return [f"ds_read_b64 {ar(fb(s,q)+2*rho,2)}, v{ob + (q >> 1)} offset:{(q & 1)*2048 + rho*512}" for rho in range(2)]
        def ra(td):
            return [f"ds_read_b64_tr_b16 {ar(fa(s,td)+2*rho,2)}, v{W} offset:{rho*16*160 + td*32}" for rho in range(2)]
        rd += ra(0) + rb(0) + rb(1) + rb(2) + rb(3)
        for td in range(1, 5): rd += ra(td)
        return rd
    def mf(s):
        return [f"v_mfma_f32_16x16x32_bf16 {vr(acc2(R,td,q),4)}, {ar(fa(s,td),4)}, {ar(fb(s,q),4)}, {vr(acc2(R,td,q),4)}"
                for td in range(5) for q in range(4)]
    C = dict(NST=G2_NST, S=G2_S, stage_bytes=G2_STAGE, s_slot=R["s_slot"], s_cnt=R["s_cnt"], s_delta=R["s_delta"], spb=2,
             addr=[ob, ob + 1, W], first_reads=reads(0),
             subs=[dict(mfma=mf(0), reads_next=reads(1), bar=True), dict(mfma=mf(1), reads_next=reads(0), bar=True)])
    emit_consumer(a, C)

def g2_epilogue(a, R):
    kept = [acc2(R, td, q) for q in range(2) for td in range(5)]
    sent = [acc2(R, td, q) for q in range(2, 4) for td in range(5)]
    emit_kreduce(a, R, kept, sent, R.get("xch_base", R["lds_base"]), 2)
    t0, t1 = R["s_t0"], R["s_t1"]; T = R["v_tmp"]
    a(f"s_lshl_b32 s{t0}, s{R['s_rt']}, 3")
    a(f"s_add_u32 s{t0}, s{t0}, s{R['s_T']}")
    a(f"s_lshr_b32 s{t1}, s{t0}, 2")
    a(f"s_lshl_b32 s{t1}, s{t1}, 3")
    a(f"s_add_u32 s{t1}, s{t1}, s{R['s_dj']}")
    a(f"s_lshl_b32 s{t1}, s{t1}, 2")
    a(f"s_and_b32 s{t0}, s{t0}, 3")
    a(f"s_add_u32 s{t1}, s{t1}, s{t0}")
    a(f"s_mul_i32 s{t1}, s{t1}, {5*1024}")
    a(f"v_lshlrev_b32 v{T}, 4, v{R['v_lane']}")
    for i, k in enumerate(kept):
        a(f"buffer_store_dwordx4 {vr(k,4)}, v{T}, {srd(R['srd_p'])}, s{t1} offen {R.get('aux_st','')}")
        if i < 9: a(f"s_add_u32 s{t1}, s{t1}, 1024")

def g2_map(a, R, s_id):
    t0, t1 = R['s_t0'], R['s_t1']
    a(f"s_and_b32 s{t0}, s{s_id}, 7")
    a(f"s_lshr_b32 s{t1}, s{s_id}, 3")
    a(f"s_and_b32 s{R['s_dj']}, s{t0}, 1")
    a(f"s_lshl_b32 s{R['s_dj']}, s{R['s_dj']}, 2")
    a(f"s_and_b32 s{R['s_t2']}, s{t1}, 3")
    a(f"s_add_u32 s{R['s_dj']}, s{R['s_dj']}, s{R['s_t2']}")
    a(f"s_lshr_b32 s{R['s_rt']}, s{t0}, 1")
    a(f"s_lshl_b32 s{R['s_rt']}, s{R['s_rt']}, 2")
    a(f"s_lshr_b32 s{t1}, s{t1}, 2")
    a(f"s_add_u32 s{R['s_rt']}, s{R['s_rt']}, s{t1}")
    if R.get("s_start") is not None:
        a(f"s_lshl_b32 s{R['s_t2']}, s{R['s_t2']}, 1")
        a(f"s_mul_i32 s{t1}, s{t1}, 3")
        a(f"s_add_u32 s{t1}, s{t1}, s{R['s_t2']}")
        a(f"s_cmp_ge_u32 s{t1}, 10")
        a(f"s_cselect_b32 s{t0}, 10, 0")
        a(f"s_sub_u32 s{R['s_start']}, s{t1}, s{t0}")

def regs_g2():
    return dict(
        s_wave=40, s_l=41, s_dj=42, s_rt=43, s_t0=44, s_t1=45, s_t2=46, s_cnt=47, s_slot=48,
        s_soff_h=49, s_soff_w=50, s_mb=51, s_mbbeg=52, s_mbend=53, s_delta=54, s_T=55, s_start=38,
        srd_o=60, srd_wo=64, srd_p=68, srd_x=72, srd_b2=76,
        v_lane=1, v_t0=2, v_t1=3, v_t2=4, v_hb=5, v_w=7, v_b2=10, v_ld=24, v_tmp=32, v_x=36, v_acc=64, a_frag=0, lds_base=0)

def emit_g2_kernel(a, name="g2_kernel"):
    R = regs_g2()
    kernel_header(a, name)
    a(f"s_cmp_ge_u32 s2, 128")
    a(f"s_cbranch_scc1 {name}_end")
    stamp_init(a)
    stamp(a, 0)
    load_kernargs(a)
    wave_ids(a, R)
    g2_map(a, R, 2)
    a("s_waitcnt lgkmcnt(0)")
    make_srd(a, R["srd_o"], P_WS, WS_O_BYTES, WS_O)
    make_srd(a, R["srd_wo"], P_WO, WO_BYTES)
    make_srd(a, R["srd_p"], P_WS, WS_P_BYTES, WS_P)
    make_srd(a, R["srd_x"], P_X, X_BYTES)
    make_srd(a, R["srd_b2"], P_B2, S_ * 2)
    a(f"s_cmp_ge_u32 s{R['s_wave']}, 4")
    a(f"s_cbranch_scc1 {name}_loader")
    g2_consumer_setup(a, R)
    g2_resid_load(a, R)
    g2_acc_init(a, R)
    stamp(a, 1)
    g2_consumer(a, R)
    stamp(a, 2)
    g2_epilogue(a, R)
    a("s_waitcnt vmcnt(0)")
    stamp(a, 3)
    stamp_flush(a, R['s_wave'], 2)
    a("s_endpgm")
    a.label(f"{name}_loader")
    a(f"s_sub_u32 s{R['s_l']}, s{R['s_wave']}, 4")
    a(f"s_cmp_ge_u32 s{R['s_l']}, 2")
    a(f"s_cbranch_scc1 {name}_loaderB")
    for variant in range(2):
        if variant == 1: a.label(f"{name}_loaderB")
        L, n = g2_loader_setup(a, R, variant)
        emit_loader_prologue(a, L, n, G2_S - 1)
        emit_loader_main(a, L, n)
        a("s_barrier")
        stamp(a, 3)
        stamp_flush(a, R['s_wave'], 2)
        a("s_endpgm")
    a.label(f"{name}_end")
    a("s_endpgm")
    return kernel_desc(name, 256, 102, 184)
```

```python
from common import *
import common as _c
import struct

G3_STAGE = 26 * 1024
G3_S = 6
G3_NST = 32
K1 = -2.0 * 0.7978845608028654 * 1.4426950408889634
K3 = K1 * 0.044715
def f2u(x): return struct.unpack("<I", struct.pack("<f", x))[0]

def g3_slots(variant):
    nsl = 7 if variant == 0 else 6
    return [((m < 2) or (m == 2 and variant == 0)) for m in range(nsl)]

def g3_loader_setup(a, R, variant):
    kinds = g3_slots(variant)
    s_l, s_dt, s_ft, vl = R["s_l"], R["s_dt"], R["s_ft"], R["v_lane"]
    t0, t1, t2 = R["s_t0"], R["s_t1"], R["s_t2"]
    V = R["v_ld"]
    vt0, vt1, vt2 = R["v_t0"], R["v_t1"], R["v_t2"]
    a(f"s_mul_i32 s{t2}, s{s_dt}, {5 * 65536}")
    a(f"s_lshr_b32 s{t0}, s{s_l}, 1")
    a(f"s_lshl_b32 s{t0}, s{t0}, 16")
    a(f"s_add_u32 s{t2}, s{t2}, s{t0}")
    a(f"s_and_b32 s{t0}, s{s_l}, 1")
    a(f"s_lshl_b32 s{t0}, s{t0}, 10")
    a(f"s_add_u32 s{t2}, s{t2}, s{t0}")
    a(f"v_lshl_add_u32 v{vt0}, v{vl}, 4, s{t2}")
    a(f"v_lshrrev_b32 v{vt2}, 4, v{vl}")
    a(f"v_and_b32 v{vt1}, 15, v{vl}")
    a(f"v_lshlrev_b32 v{V}, 1, v{vt2}")
    a(f"v_xor_b32 v{vt1}, v{vt1}, v{V}")
    a(f"v_lshlrev_b32 v{vt1}, 4, v{vt1}")
    a(f"v_mul_u32_u24 v{vt2}, 3456, v{vt2}")
    a(f"s_lshl_b32 s{t0}, s{s_ft}, 8")
    a(f"v_add_u32 v{vt2}, s{t0}, v{vt2}")
    slots = []
    for m, is_h in enumerate(kinds):
        if is_h:
            a(f"v_add_u32 v{V+m}, {m * 2 * 65536}, v{vt0}")
            slots.append(dict(voff=V + m, srd=R["srd_h"], soff=R["s_soff_h"], aux=R.get("aux_h", ""), dep=True))
        else:
            a(f"s_add_i32 s{t0}, s{s_l}, {4*m - 10}")
            a(f"s_bfe_u32 s{t1}, s{t0}, 0x10001")
            a(f"s_lshl_b32 s{t1}, s{t1}, 7")
            a(f"v_xor_b32 v{V+m}, s{t1}, v{vt1}")
            a(f"s_mul_i32 s{t0}, s{t0}, {4*3456}")
            a(f"v_add3_u32 v{V+m}, v{V+m}, v{vt2}, s{t0}")
            slots.append(dict(voff=V + m, srd=R["srd_w1"], soff=R["s_soff_w"], dep=False))
    L = dict(S=G3_S, NST=G3_NST, stage_bytes=G3_STAGE, slots=slots, m0_step=4096,
             advance=[(R["s_soff_h"], 2048, 2048 * G3_NST), (R["s_soff_w"], 64 * 3456, 64 * 3456 * G3_NST)],
             s_mb=R["s_mb"], s_mbbeg=R["s_mbbeg"], s_mbend=R["s_mbend"], s_cnt=R["s_cnt"])
    emit_loader_init(a, L, s_l, R["lds_base"], R.get("s_start"))
    return L, len(kinds)

def g3_consumer_setup(a, R):
    vl, w = R["v_lane"], R["s_wave"]
    vt0, vt1, vt2 = R["v_t0"], R["v_t1"], R["v_t2"]
    hb, W = R["v_hb"], R["v_w"]
    t0, t1 = R["s_t0"], R["s_t1"]
    a(f"s_lshr_b32 s{t1}, s{w}, 1")
    a(f"s_lshl_b32 s{t0}, s{t1}, 10")
    a(f"s_add_u32 s{t0}, s{t0}, {R['lds_base']}")
    a(f"v_lshl_add_u32 v{hb}, v{vl}, 4, s{t0}")
    a(f"v_and_b32 v{vt0}, 15, v{vl}")
    a(f"v_lshrrev_b32 v{vt1}, 4, v{vl}")
    a(f"v_lshrrev_b32 v{vt2}, 2, v{vt0}")
    a(f"v_and_b32 v{W}, 1, v{vt1}")
    a(f"v_lshl_or_b32 v{W}, v{W}, 2, v{vt2}")
    a(f"s_and_b32 s{t0}, s{w}, 1")
    a(f"s_lshl_b32 s{t0}, s{t0}, 1")
    a(f"s_add_u32 s{t0}, s{t0}, s{t1}")
    a(f"s_lshl_b32 s{t0}, s{t0}, 1")
    a(f"v_xor_b32 v{W}, s{t0}, v{W}")
    a(f"v_lshlrev_b32 v{W}, 5, v{W}")
    a(f"v_lshl_add_u32 v{vt1}, v{vt1}, 3, v{vt2}")
    a(f"v_lshl_add_u32 v{W}, v{vt1}, 8, v{W}")
    a(f"v_and_b32 v{vt0}, 3, v{vt0}")
    a(f"v_lshl_add_u32 v{W}, v{vt0}, 3, v{W}")
    for q in range(1, 4):
        a(f"v_xor_b32 v{W+q}, {q << 5}, v{W}")
    a(f"s_lshl_b32 s{t0}, s{t1}, 13")
    a(f"s_add_u32 s{t0}, s{t0}, {10*1024 + R['lds_base']}")
    for q in range(4):
        a(f"v_add_u32 v{W+q}, s{t0}, v{W+q}")

def g3_bias_load(a, R):
    vl, w = R["v_lane"], R["s_wave"]
    vt0 = R["v_t0"]; B = R["v_bias"]; t0, t1 = R["s_t0"], R["s_t1"]
    a(f"s_and_b32 s{t0}, s{w}, 1")
    a(f"s_lshl_b32 s{t0}, s{t0}, 1")
    a(f"s_lshr_b32 s{t1}, s{w}, 1")
    a(f"s_add_u32 s{t0}, s{t0}, s{t1}")
    a(f"s_lshl_b32 s{t1}, s{R['s_ft']}, 2")
    a(f"s_add_u32 s{R['s_fb']}, s{t0}, s{t1}")
    a(f"s_lshl_b32 s{t0}, s{R['s_fb']}, 6")
    a(f"v_lshrrev_b32 v{vt0}, 4, v{vl}")
    a(f"v_lshl_add_u32 v{vt0}, v{vt0}, 3, s{t0}")
    a(f"buffer_load_dwordx2 v[{B}:{B+1}], v{vt0}, {srd(R['srd_b1'])}, 0 offen")
    a(f"buffer_load_dwordx2 v[{B+2}:{B+3}], v{vt0}, {srd(R['srd_b1'])}, 0 offen offset:32")

def acc3(R, td, q): return R["v_acc"] + (q * 5 + td) * 4

def g3_acc_init(a, R):
    B = R["v_bias"]; T = R["v_biasf"]
    for q in range(2, 4):
        for td in range(5):
            for r in range(0, 4, 2):
                a(f"v_mov_b64 v[{acc3(R,td,q)+r}:{acc3(R,td,q)+r+1}], 0")
    a("s_waitcnt vmcnt(0)")
    for tf in range(2):
        for h in range(2):
            a(f"v_lshlrev_b32 v{T+4*tf+2*h}, 16, v{B+2*tf+h}")
            a(f"v_and_b32 v{T+4*tf+2*h+1}, 0xffff0000, v{B+2*tf+h}")
    for q in range(2):
        for td in range(5):
            for r in range(0, 4, 2):
                a(f"v_mov_b64 v[{acc3(R,td,q)+r}:{acc3(R,td,q)+r+1}], v[{T+4*q+r}:{T+4*q+r+1}]")

def g3_consumer(a, R):
    F = R["a_frag"]; hb, W = R["v_hb"], R["v_w"]
    def fa(s, q): return F + s * 36 + q * 4
    def fb(s, td): return F + s * 36 + 16 + td * 4
    def reads(s):
        rd = [f"ds_read_b128 {ar(fb(s,0),4)}, v{hb} offset:0"]
        for q in range(4):
            for rho in range(2):
                rd.append(f"ds_read_b64_tr_b16 {ar(fa(s,q)+2*rho,2)}, v{W+q} offset:{rho*1024}")
        for td in range(1, 5):
            rd.append(f"ds_read_b128 {ar(fb(s,td),4)}, v{hb} offset:{2*td*1024}")
        return rd
    def mf(s):
        return [f"v_mfma_f32_16x16x32_bf16 {vr(acc3(R,td,q),4)}, {ar(fa(s,q),4)}, {ar(fb(s,td),4)}, {vr(acc3(R,td,q),4)}"
                for td in range(5) for q in range(4)]
    C = dict(NST=G3_NST, S=G3_S, stage_bytes=G3_STAGE, s_slot=R["s_slot"], s_cnt=R["s_cnt"], s_delta=R["s_delta"], spb=2,
             addr=[hb] + [W + q for q in range(4)], first_reads=reads(0),
             subs=[dict(mfma=mf(0), reads_next=reads(1), bar=True), dict(mfma=mf(1), reads_next=reads(0), bar=True)])
    emit_consumer(a, C)

def emit_kreduce(a, R, kept, sent, ntiles_lds_base, s_w_partner_xor):
    vl, w = R["v_lane"], R["s_wave"]; vt0, vt1 = R["v_t0"], R["v_t1"]; t0 = R["s_t0"]
    n = len(sent)
    a(f"s_mul_i32 s{t0}, s{w}, {n * 1024}")
    a(f"s_add_u32 s{t0}, s{t0}, {ntiles_lds_base}")
    a(f"v_lshl_add_u32 v{vt0}, v{vl}, 4, s{t0}")
    a(f"s_xor_b32 s{t0}, s{w}, {s_w_partner_xor}")
    a(f"s_mul_i32 s{t0}, s{t0}, {n * 1024}")
    a(f"s_add_u32 s{t0}, s{t0}, {ntiles_lds_base}")
    a(f"v_lshl_add_u32 v{vt1}, v{vl}, 4, s{t0}")
    a("s_waitcnt lgkmcnt(0)")
    a("s_nop 7")
    for i, rg in enumerate(sent):
        a(f"ds_write_b128 v{vt0}, {vr(rg,4)} offset:{i*1024}")
    a("s_waitcnt lgkmcnt(0)")
    a("s_barrier")
    for i, rg in enumerate(sent):
        a(f"ds_read_b128 {vr(rg,4)}, v{vt1} offset:{i*1024}")
    for i, (k, rg) in enumerate(zip(kept, sent)):
        a(f"s_waitcnt lgkmcnt({min(n - 1 - i, 15)})")
        a(f"v_pk_add_f32 v[{k}:{k+1}], v[{k}:{k+1}], v[{rg}:{rg+1}]")
        a(f"v_pk_add_f32 v[{k+2}:{k+3}], v[{k+2}:{k+3}], v[{rg+2}:{rg+3}]")

def gelu_pair(a, x, t, p, kk):
    a(f"v_pk_mul_f32 v[{t}:{t+1}], v[{x}:{x+1}], v[{x}:{x+1}]")
    a(f"v_pk_fma_f32 v[{t}:{t+1}], v[{t}:{t+1}], s[{kk+2}:{kk+3}], v[{p}:{p+1}]")
    a(f"v_pk_mul_f32 v[{t}:{t+1}], v[{t}:{t+1}], v[{x}:{x+1}]")
    a(f"v_exp_f32 v{t}, v{t}")
    a(f"v_exp_f32 v{t+1}, v{t+1}")
    a(f"v_pk_add_f32 v[{t}:{t+1}], v[{t}:{t+1}], 1.0 op_sel_hi:[1,0]")
    a(f"v_rcp_f32 v{t}, v{t}")
    a(f"v_rcp_f32 v{t+1}, v{t+1}")
    a(f"v_pk_mul_f32 v[{x}:{x+1}], v[{x}:{x+1}], v[{t}:{t+1}]")

class _B(list):
    def __call__(self, s): self.append(s)

def g3_epilogue(a, R):
    T = R["v_tmp"]; kk = R["s_k"]
    kept = [acc3(R, td, q) for td in range(5) for q in range(2)]
    sent = [acc3(R, td, q) for td in range(5) for q in range(2, 4)]
    emit_kreduce(a, R, kept, sent, R.get("xch_base", R["lds_base"]), 2)
    a(f"s_mov_b32 s{kk+2}, {hex(f2u(K3))}")
    a(f"s_mov_b32 s{kk+3}, {hex(f2u(K3))}")
    a(f"v_mov_b32 v{T}, {hex(f2u(K1))}")
    a(f"v_mov_b32 v{T+1}, {hex(f2u(K1))}")
    a(f"s_mul_i32 s{R['s_t1']}, s{R['s_dt']}, {5*54}")
    a(f"s_add_u32 s{R['s_t1']}, s{R['s_t1']}, s{R['s_fb']}")
    a(f"s_lshl_b32 s{R['s_t1']}, s{R['s_t1']}, 10")
    a(f"v_lshlrev_b32 v{T+2}, 4, v{R['v_lane']}")
    skip = a.uid("Lg3skip")
    a(f"s_cmp_ge_u32 s{R['s_fb']}, 54")
    a(f"s_cbranch_scc1 {skip}")
    lp = None
    for td in range(5):
        regs = [acc3(R, td, 0), acc3(R, td, 0) + 2, acc3(R, td, 1), acc3(R, td, 1) + 2]
        tt = T + 4
        streams = []
        for q in range(4):
            b = _B(); gelu_pair(b, regs[q], tt + 2 * q, T, kk); streams.append(b)
        for i in range(len(streams[0])):
            for q in range(4): a(streams[q][i])
        o = T + 12 + (td & 1) * 4
        for q in range(4):
            a(f"v_cvt_pk_bf16_f32 v{o+q}, v{regs[q]}, v{regs[q]+1}")
        a(f"buffer_store_dwordx4 v[{o}:{o+3}], v{T+2}, {srd(R['srd_u'])}, s{R['s_t1']} offen {R.get('aux_st','')}")
        if td < 4:
            a(f"s_add_u32 s{R['s_t1']}, s{R['s_t1']}, {54*1024}")
    a.label(skip)

def g3_map(a, R, s_id):
    t0, t1, t2, dt, ft = R['s_t0'], R['s_t1'], R['s_t2'], R['s_dt'], R['s_ft']
    a(f"s_and_b32 s{t0}, s{s_id}, 7")
    a(f"s_lshr_b32 s{t1}, s{s_id}, 3")
    if R.get("s_start") is not None:
        if _c.EXP.get("norot"): a(f"s_mov_b32 s{R['s_start']}, 0")
        else:
            a(f"s_mul_i32 s{R['s_start']}, s{t1}, 37")
            a(f"s_lshr_b32 s{R['s_start']}, s{R['s_start']}, 4")
    a(f"s_lshr_b32 s{t2}, s{t0}, 2")
    a(f"s_mul_i32 s{ft}, s{t2}, 7")
    a(f"s_and_b32 s{dt}, s{t0}, 1")
    a(f"s_lshl_b32 s{dt}, s{dt}, 2")
    a(f"s_bfe_u32 s{t0}, s{t0}, 0x10001")
    lab = a.uid("Lmap"); lab2 = a.uid("Lmap")
    a(f"s_cmp_ge_u32 s{t1}, 12")
    a(f"s_cbranch_scc1 {lab}")
    a(f"s_lshl_b32 s{t0}, s{t0}, 2")
    a(f"s_add_u32 s{ft}, s{ft}, s{t0}")
    a(f"s_lshr_b32 s{t2}, s{t1}, 2")
    a(f"s_add_u32 s{ft}, s{ft}, s{t2}")
    a(f"s_and_b32 s{t1}, s{t1}, 3")
    a(f"s_add_u32 s{dt}, s{dt}, s{t1}")
    a(f"s_branch {lab2}")
    a.label(lab)
    a(f"s_add_u32 s{ft}, s{ft}, 3")
    a(f"s_lshl_b32 s{t0}, s{t0}, 1")
    a(f"s_add_u32 s{dt}, s{dt}, s{t0}")
    a(f"s_sub_u32 s{t1}, s{t1}, 12")
    a(f"s_add_u32 s{dt}, s{dt}, s{t1}")
    a.label(lab2)

def regs_g3():
    R = dict(
        s_wave=40, s_l=41, s_dt=42, s_ft=43, s_t0=44, s_t1=45, s_t2=46, s_cnt=47, s_slot=48,
        s_soff_h=49, s_soff_w=50, s_mb=51, s_mbbeg=52, s_mbend=53, s_delta=54, s_fb=55, s_k=56, s_start=38,
        srd_h=60, srd_w1=64, srd_b1=68, srd_u=72,
        v_lane=1, v_t0=2, v_t1=3, v_t2=4, v_hb=5, v_w=10,
        v_bias=14, v_biasf=144, v_ld=24, v_tmp=32, v_acc=64, a_frag=0, lds_base=0)
    return R

def wave_ids(a, R):
    a(f"v_and_b32 v{R['v_lane']}, 63, v0")
    a(f"v_lshrrev_b32 v{R['v_t0']}, 6, v0")
    a("s_nop 0")
    a(f"v_readfirstlane_b32 s{R['s_wave']}, v{R['v_t0']}")

def emit_g3_kernel(a, name="g3_kernel"):
    R = regs_g3()
    kernel_header(a, name)
    a(f"s_cmp_ge_u32 s2, 112")
    a(f"s_cbranch_scc1 {name}_end")
    stamp_init(a)
    stamp(a, 0)
    load_kernargs(a)
    wave_ids(a, R)
    g3_map(a, R, 2)
    a("s_waitcnt lgkmcnt(0)")
    make_srd(a, R["srd_h"], P_WS, WS_H_BYTES, WS_H)
    make_srd(a, R["srd_w1"], P_W1, W1_BYTES)
    make_srd(a, R["srd_b1"], P_B1, F_ * 2)
    make_srd(a, R["srd_u"], P_WS, WS_U_BYTES, WS_U)
    a(f"s_cmp_ge_u32 s{R['s_wave']}, 4")
    a(f"s_cbranch_scc1 {name}_loader")
    g3_bias_load(a, R)
    g3_consumer_setup(a, R)
    g3_acc_init(a, R)
    stamp(a, 1)
    g3_consumer(a, R)
    stamp(a, 2)
    g3_epilogue(a, R)
    a("s_waitcnt vmcnt(0)")
    stamp(a, 3)
    stamp_flush(a, R['s_wave'], 2)
    a("s_endpgm")
    a.label(f"{name}_loader")
    a(f"s_sub_u32 s{R['s_l']}, s{R['s_wave']}, 4")
    a(f"s_cmp_ge_u32 s{R['s_l']}, 2")
    a(f"s_cbranch_scc1 {name}_loaderB")
    for variant in range(2):
        if variant == 1: a.label(f"{name}_loaderB")
        L, n = g3_loader_setup(a, R, variant)
        stamp(a, 1)
        emit_loader_prologue(a, L, n, G3_S - 1)
        stamp(a, 2)
        emit_loader_main(a, L, n)
        a("s_barrier")
        stamp(a, 3)
        stamp_flush(a, R['s_wave'], 2)
        iter_flush(a, R['s_wave'], 2)
        a("s_endpgm")
    a.label(f"{name}_end")
    a("s_endpgm")
    return kernel_desc(name, 256, 102, 184)
```

```python
from common import *
import common as _c
from g3 import wave_ids, f2u

LN_PITCH = 1312
LN_LDS = 16 * LN_PITCH + 64

def allreduce32(a, v, tmp):
    for r in (8, 4, 2, 1):
        a(f"v_add_f32_dpp v{v}, v{v}, v{v} row_ror:{r} row_mask:0xf bank_mask:0xf")
    a(f"v_mov_b32 v{tmp}, v{v}")
    a(f"v_permlane16_swap_b32 v{v}, v{tmp}")
    a(f"v_add_f32 v{v}, v{v}, v{tmp}")

def sum20(a, X, dst, tmp, sq=False):
    if sq:
        a(f"v_pk_mul_f32 v[{tmp}:{tmp+1}], v[{X}:{X+1}], v[{X}:{X+1}]")
        for i in range(2, 20, 2):
            a(f"v_pk_fma_f32 v[{tmp}:{tmp+1}], v[{X+i}:{X+i+1}], v[{X+i}:{X+i+1}], v[{tmp}:{tmp+1}]")
    else:
        a(f"v_pk_add_f32 v[{tmp}:{tmp+1}], v[{X}:{X+1}], v[{X+2}:{X+3}]")
        for i in range(4, 20, 2):
            a(f"v_pk_add_f32 v[{tmp}:{tmp+1}], v[{tmp}:{tmp+1}], v[{X+i}:{X+i+1}]")
    a(f"v_add_f32 v{dst}, v{tmp}, v{tmp+1}")

def unpack(a, X, P):
    for i in range(10):
        a(f"v_lshlrev_b32 v{X+2*i}, 16, v{P+i}")
        a(f"v_and_b32 v{X+2*i+1}, 0xffff0000, v{P+i}")

def normalize(a, R, X, mean_out, rstd_out):
    T = R["v_lt"]; S = R["v_ls"]
    sum20(a, X, S, T)
    allreduce32(a, S, T)
    a(f"v_mul_f32 v{mean_out}, {hex(f2u(1.0/640))}, v{S}")
    a(f"v_mov_b32 v{mean_out+1}, v{mean_out}")
    for i in range(0, 20, 2):
        a(f"v_pk_add_f32 v[{X+i}:{X+i+1}], v[{X+i}:{X+i+1}], v[{mean_out}:{mean_out+1}] neg_lo:[0,1] neg_hi:[0,1]")
    sum20(a, X, S, T, sq=True)
    allreduce32(a, S, T)
    a(f"v_mov_b32 v{T}, {hex(f2u(1e-5))}")
    a(f"v_fmac_f32 v{T}, {hex(f2u(1.0/640))}, v{S}")
    a(f"v_rsq_f32 v{rstd_out}, v{T}")
    a("s_nop 0")
    a(f"v_mov_b32 v{rstd_out+1}, v{rstd_out}")

def ln_loads(a, R, s_row0):
    vl = R["v_lane"]; P = R["v_lp"]; A = R["v_la"]; t0 = R["s_t0"]
    a(f"s_lshl_b32 s{t0}, s{R['s_wave']}, 1")
    a(f"s_add_u32 s{t0}, s{t0}, s{s_row0}")
    a(f"v_lshrrev_b32 v{A}, 5, v{vl}")
    a(f"v_add_u32 v{A+1}, s{t0}, v{A}")
    a(f"v_mul_u32_u24 v{A}, 1280, v{A+1}")
    a(f"v_and_b32 v{R['v_t0']}, 31, v{vl}")
    a(f"v_lshl_add_u32 v{A}, v{R['v_t0']}, 3, v{A}")
    for m in range(5):
        a(f"buffer_load_dwordx2 v[{P+2*m}:{P+2*m+1}], v{A}, {srd(R['srd_x'])}, 0 offen offset:{m*256}")

def ln_compute(a, R, s_blk):
    vl = R["v_lane"]; P = R["v_lp"]; X = R["v_lx"]; A = R["v_la"]; M = R["v_lm"]
    t0, t1 = R["s_t0"], R["s_t1"]; vt0, vt1, vt2 = R["v_t0"], R["v_t1"], R["v_t2"]
    a("s_waitcnt vmcnt(0)")
    unpack(a, X, P)
    normalize(a, R, X, M, M + 2)
    a(f"v_mov_b32 v{M+1}, v{M+2}")
    a(f"v_lshlrev_b32 v{vt0}, 3, v{A+1}")
    a("s_mov_b32 s4, 1")
    a("s_mov_b32 s5, 1")
    a("s_mov_b64 exec, s[4:5]")
    a(f"buffer_store_dwordx2 v[{M}:{M+1}], v{vt0}, {srd(R['srd_st'])}, 0 offen {R.get('aux_st','')}")
    a("s_mov_b64 exec, -1")
    for i in range(0, 20, 2):
        a(f"v_pk_mul_f32 v[{X+i}:{X+i+1}], v[{X+i}:{X+i+1}], v[{M+2}:{M+3}]")
    for i in range(10):
        a(f"v_cvt_pk_bf16_f32 v{P+i}, v{X+2*i}, v{X+2*i+1}")
    unpack(a, X, P)
    normalize(a, R, X, M + 4, M + 6)
    for i in range(0, 20, 2):
        a(f"v_pk_mul_f32 v[{X+i}:{X+i+1}], v[{X+i}:{X+i+1}], v[{M+6}:{M+7}]")
    for i in range(10):
        a(f"v_cvt_pk_bf16_f32 v{P+i}, v{X+2*i}, v{X+2*i+1}")
    a(f"s_lshl_b32 s{t0}, s{R['s_wave']}, 1")
    a(f"v_lshrrev_b32 v{vt0}, 5, v{vl}")
    a(f"v_add_u32 v{vt0}, s{t0}, v{vt0}")
    a(f"v_mul_u32_u24 v{vt0}, {LN_PITCH}, v{vt0}")
    a(f"v_and_b32 v{vt1}, 31, v{vl}")
    a(f"v_lshl_add_u32 v{vt0}, v{vt1}, 3, v{vt0}")
    if R["ln_lds"]: a(f"v_add_u32 v{vt0}, {R['ln_lds']}, v{vt0}")
    for m in range(5):
        a(f"ds_write_b64 v{vt0}, v[{P+2*m}:{P+2*m+1}] offset:{m*256}")
    a(f"v_lshrrev_b32 v{vt0}, 4, v{vl}")
    a(f"v_and_b32 v{vt1}, 15, v{vl}")
    a(f"v_and_b32 v{vt2}, 1, v{vt0}")
    a(f"v_lshlrev_b32 v{vt2}, 3, v{vt2}")
    a(f"v_lshrrev_b32 v{X}, 2, v{vt1}")
    a(f"v_add_u32 v{vt2}, v{vt2}, v{X}")
    a(f"v_mul_u32_u24 v{vt2}, {LN_PITCH}, v{vt2}")
    a(f"v_and_b32 v{X}, 3, v{vt1}")
    a(f"v_lshl_add_u32 v{vt2}, v{X}, 3, v{vt2}")
    a(f"v_lshrrev_b32 v{X}, 1, v{vt0}")
    a(f"v_lshl_add_u32 v{vt2}, v{X}, 5, v{vt2}")
    a(f"s_lshl_b32 s{t0}, s{R['s_wave']}, 6")
    a(f"s_add_u32 s{t0}, s{t0}, {R['ln_lds']}")
    a(f"v_add_u32 v{vt2}, s{t0}, v{vt2}")
    a(f"v_and_b32 v{X+1}, 31, v{vl}")
    a(f"v_lshlrev_b32 v{X+1}, 4, v{X+1}")
    a(f"v_lshl_add_u32 v{X+1}, v{X}, 16, v{X+1}")
    a(f"s_lshr_b32 s{t0}, s{s_blk}, 1")
    a(f"s_lshl_b32 s{t0}, s{t0}, 10")
    a(f"s_and_b32 s{t1}, s{s_blk}, 1")
    a(f"s_lshl_b32 s{t1}, s{t1}, 9")
    a(f"s_add_u32 s{t0}, s{t0}, s{t1}")
    a(f"s_lshl_b32 s{t1}, s{R['s_wave']}, 17")
    a(f"s_add_u32 s{t0}, s{t0}, s{t1}")
    a("s_waitcnt lgkmcnt(0)")
    a("s_barrier")
    skip = a.uid("Llnskip")
    for m in range(3):
        if m == 2:
            a(f"s_cmp_ge_u32 s{R['s_wave']}, 4")
            a(f"s_cbranch_scc1 {skip}")
        o = X + 4 + 4 * m
        for rho in range(2):
            a(f"ds_read_b64_tr_b16 v[{o+2*rho}:{o+2*rho+1}], v{vt2} offset:{m*8*64 + rho*4*LN_PITCH}")
        a("s_waitcnt lgkmcnt(0)")
        a(f"buffer_store_dwordx4 v[{o}:{o+3}], v{X+1}, {srd(R['srd_h'])}, s{t0} offen {R.get('aux_st','')}")
        if m < 2: a(f"s_add_u32 s{t0}, s{t0}, {8 * 2 * 65536}")
    a.label(skip)

def regs_ln():
    return dict(s_wave=40, s_t0=44, s_t1=45, s_row0=46, srd_x=60, srd_h=64, srd_st=68,
                v_lane=1, v_t0=2, v_t1=3, v_t2=4, v_la=6, v_lt=8, v_ls=10, v_lm=12, v_lp=20, v_lx=32, ln_lds=0)

def emit_ln_kernel(a, name="ln_kernel"):
    R = regs_ln()
    kernel_header(a, name)
    a(f"s_cmp_ge_u32 s2, 128")
    a(f"s_cbranch_scc1 {name}_end")
    stamp_init(a)
    stamp(a, 0)
    load_kernargs(a)
    wave_ids(a, R)
    a(f"s_lshl_b32 s{R['s_row0']}, s2, 4")
    a("s_waitcnt lgkmcnt(0)")
    make_srd(a, R["srd_x"], P_X, X_BYTES)
    make_srd(a, R["srd_h"], P_WS, WS_H_BYTES, WS_H)
    make_srd(a, R["srd_st"], P_WS, WS_ST_BYTES, WS_ST)
    ln_loads(a, R, R["s_row0"])
    ln_compute(a, R, 2)
    a("s_waitcnt vmcnt(0)")
    stamp(a, 1)
    stamp_flush(a, R['s_wave'], 2)
    a.label(f"{name}_end")
    a("s_endpgm")
    return kernel_desc(name, 64, 102, 64)
```

```python
from common import *
import common as _c
from g3 import emit_kreduce, wave_ids

P3_STAGE = 18 * 1024
P3_S = 8
P3_NST = 27

def p3_slots(variant):
    return [True, True, True, False, False] if variant == 0 else [True, True, False, False]

def p3_loader_setup(a, R, variant):
    kinds = p3_slots(variant)
    s_l, s_dt, s_st, vl = R["s_l"], R["s_dt"], R["s_st"], R["v_lane"]
    t0, t1, t2 = R["s_t0"], R["s_t1"], R["s_t2"]
    V = R["v_ld"]; vt0, vt1, vt2 = R["v_t0"], R["v_t1"], R["v_t2"]
    a(f"s_mul_i32 s{t2}, s{s_dt}, {5 * 54 * 1024}")
    a(f"s_lshr_b32 s{t0}, s{s_l}, 1")
    a(f"s_mul_i32 s{t0}, s{t0}, {54 * 1024}")
    a(f"s_add_u32 s{t2}, s{t2}, s{t0}")
    a(f"s_and_b32 s{t0}, s{s_l}, 1")
    a(f"s_lshl_b32 s{t0}, s{t0}, 10")
    a(f"s_add_u32 s{t2}, s{t2}, s{t0}")
    a(f"v_lshl_add_u32 v{vt0}, v{vl}, 4, s{t2}")
    a(f"v_lshrrev_b32 v{vt2}, 4, v{vl}")
    a(f"v_lshlrev_b32 v{vt2}, 1, v{vt2}")
    a(f"v_and_b32 v{vt1}, 7, v{vl}")
    a(f"v_xor_b32 v{vt1}, v{vt1}, v{vt2}")
    a(f"v_lshlrev_b32 v{vt1}, 4, v{vt1}")
    a(f"v_lshrrev_b32 v{vt2}, 3, v{vl}")
    a(f"v_lshl_add_u32 v{vt1}, v{vt2}, 12, v{vt1}")
    a(f"s_lshl_b32 s{t0}, s{s_st}, 7")
    a(f"v_add_u32 v{vt1}, s{t0}, v{vt1}")
    slots = []
    for m, is_u in enumerate(kinds):
        if is_u:
            a(f"v_add_u32 v{V+m}, {m * 2 * 54 * 1024}, v{vt0}")
            slots.append(dict(voff=V + m, srd=R["srd_u"], soff=R["s_soff_h"], aux=R.get("aux_h", ""), dep=True))
        else:
            a(f"s_add_i32 s{t0}, s{s_l}, {4*m - 10}")
            a(f"s_lshl_b32 s{t0}, s{t0}, 15")
            a(f"v_add_u32 v{V+m}, s{t0}, v{vt1}")
            slots.append(dict(voff=V + m, srd=R["srd_w2"], soff=R["s_soff_w"], dep=False))
    L = dict(S=P3_S, NST=P3_NST, stage_bytes=P3_STAGE, slots=slots, m0_step=4096,
             advance=[(R["s_soff_h"], 2048, 2048 * P3_NST), (R["s_soff_w"], 64 * 4096, 64 * 4096 * P3_NST)],
             s_mb=R["s_mb"], s_mbbeg=R["s_mbbeg"], s_mbend=R["s_mbend"], s_cnt=R["s_cnt"])
    emit_loader_init(a, L, s_l, R["lds_base"], R.get("s_start"))
    return L, len(kinds)

def accp(R, td, q): return R["v_acc"] + (q * 5 + td) * 4

def p3_consumer_setup(a, R):
    vl, w = R["v_lane"], R["s_wave"]
    vt0, vt1, vt2 = R["v_t0"], R["v_t1"], R["v_t2"]
    ub, W = R["v_hb"], R["v_w"]; t0, t1 = R["s_t0"], R["s_t1"]
    a(f"s_lshr_b32 s{t1}, s{w}, 1")
    a(f"s_lshl_b32 s{t0}, s{t1}, 10")
    a(f"s_add_u32 s{t0}, s{t0}, {R['lds_base']}")
    a(f"v_lshl_add_u32 v{ub}, v{vl}, 4, s{t0}")
    a(f"v_and_b32 v{vt0}, 15, v{vl}")
    a(f"v_lshrrev_b32 v{vt1}, 4, v{vl}")
    a(f"v_lshrrev_b32 v{vt2}, 2, v{vt0}")
    a(f"v_lshl_add_u32 v{vt1}, v{vt1}, 2, v{vt2}")
    a(f"v_bfe_u32 v{W}, v{vt1}, 1, 2")
    a(f"s_and_b32 s{t0}, s{w}, 1")
    a(f"s_lshl_b32 s{t0}, s{t0}, 1")
    a(f"s_add_u32 s{R['s_T']}, s{t0}, s{t1}")
    a(f"v_xor_b32 v{W}, s{R['s_T']}, v{W}")
    a(f"v_lshlrev_b32 v{W}, 5, v{W}")
    a(f"v_lshl_add_u32 v{W}, v{vt1}, 7, v{W}")
    a(f"v_and_b32 v{vt0}, 3, v{vt0}")
    a(f"v_lshl_add_u32 v{W}, v{vt0}, 3, v{W}")
    a(f"v_xor_b32 v{W+1}, 32, v{W}")
    a(f"s_lshl_b32 s{t0}, s{t1}, 12")
    a(f"s_add_u32 s{t0}, s{t0}, {10*1024 + R['lds_base']}")
    for q in range(2):
        a(f"v_add_u32 v{W+q}, s{t0}, v{W+q}")

def p3_partial_load(a, R):
    t0, t1 = R["s_t0"], R["s_t1"]; vt0 = R["v_t0"]
    a(f"s_lshl_b32 s{t0}, s{R['s_st']}, 3")
    a(f"s_add_u32 s{t0}, s{t0}, s{R['s_dt']}")
    a(f"s_lshl_b32 s{t0}, s{t0}, 2")
    a(f"s_add_u32 s{t0}, s{t0}, s{R['s_T']}")
    a(f"s_mul_i32 s{t0}, s{t0}, {5 * 1024}")
    a(f"v_lshl_add_u32 v{vt0}, v{R['v_lane']}, 4, s{t0}")
    for td in range(5):
        if td < 4:
            a(f"buffer_load_dwordx4 {vr(accp(R,td,0),4)}, v{vt0}, {srd(R['srd_p'])}, 0 offen offset:{td*1024} {R.get('aux_h','')}")
        else:
            a(f"v_add_u32 v{vt0}, 4096, v{vt0}")
            a(f"buffer_load_dwordx4 {vr(accp(R,td,0),4)}, v{vt0}, {srd(R['srd_p'])}, 0 offen {R.get('aux_h','')}")
    for td in range(5):
        for r in range(0, 4, 2):
            a(f"v_mov_b64 v[{accp(R,td,1)+r}:{accp(R,td,1)+r+1}], 0")

def p3_consumer(a, R):
    F = R["a_frag"]; ub, W = R["v_hb"], R["v_w"]
    def fa(s, td): return F + s * 28 + td * 4
    def fb(s, q): return F + s * 28 + 20 + q * 4
    def reads(s):
        rd = []
        for q in range(2):
            for rho in range(2):
                rd.append(f"ds_read_b64_tr_b16 {ar(fb(s,q)+2*rho,2)}, v{W+q} offset:{rho*16*128}")
        for td in range(5):
            rd.append(f"ds_read_b128 {ar(fa(s,td),4)}, v{ub} offset:{2*td*1024}")
        return [rd[4], rd[0], rd[1], rd[2], rd[3]] + rd[5:]
    def mf(s):
        return [f"v_mfma_f32_16x16x32_bf16 {vr(accp(R,td,q),4)}, {ar(fa(s,td),4)}, {ar(fb(s,q),4)}, {vr(accp(R,td,q),4)}"
                for td in range(5) for q in range(2)]
    C = dict(NST=P3_NST, S=P3_S, stage_bytes=P3_STAGE, s_slot=R["s_slot"], s_cnt=R["s_cnt"], s_delta=R["s_delta"], spb=2,
             addr=[ub, W, W + 1], first_reads=reads(0),
             subs=[dict(mfma=mf(0), reads_next=reads(1), bar=True), dict(mfma=mf(1), reads_next=reads(0), bar=True)])
    emit_consumer(a, C)

def p3_epilogue(a, R):
    kept = [accp(R, td, 0) for td in range(5)]
    sent = [accp(R, td, 1) for td in range(5)]
    emit_kreduce(a, R, kept, sent, R.get("xch_base", R["lds_base"]), 2)
    T = R["v_tmp"]; vl = R["v_lane"]; t0 = R["s_t0"]
    a(f"s_lshl_b32 s{t0}, s{R['s_st']}, 2")
    a(f"s_add_u32 s{t0}, s{t0}, s{R['s_T']}")
    a(f"s_mul_i32 s{t0}, s{t0}, {16*1280}")
    a(f"s_mul_i32 s{R['s_t1']}, s{R['s_dt']}, 160")
    a(f"s_add_u32 s{t0}, s{t0}, s{R['s_t1']}")
    a(f"v_and_b32 v{T}, 15, v{vl}")
    a(f"v_mul_u32_u24 v{T}, 1280, v{T}")
    a(f"v_lshrrev_b32 v{T+1}, 4, v{vl}")
    a(f"v_lshl_add_u32 v{T}, v{T+1}, 3, v{T}")
    for td in range(5):
        k = kept[td]; o = T + 2 + 2 * (td & 1)
        a(f"v_cvt_pk_bf16_f32 v{o}, v{k}, v{k+1}")
        a(f"v_cvt_pk_bf16_f32 v{o+1}, v{k+2}, v{k+3}")
        a(f"buffer_store_dwordx2 v[{o}:{o+1}], v{T}, {srd(R['srd_out'])}, s{t0} offen offset:{td*32}")

def p3_map(a, R, s_id):
    t0, t1 = R['s_t0'], R['s_t1']
    a(f"s_and_b32 s{t0}, s{s_id}, 7")
    a(f"s_lshr_b32 s{t1}, s{s_id}, 3")
    a(f"s_and_b32 s{R['s_dt']}, s{t0}, 1")
    a(f"s_lshl_b32 s{R['s_dt']}, s{R['s_dt']}, 2")
    a(f"s_and_b32 s{R['s_t2']}, s{t1}, 3")
    a(f"s_add_u32 s{R['s_dt']}, s{R['s_dt']}, s{R['s_t2']}")
    a(f"s_lshr_b32 s{R['s_st']}, s{t0}, 1")
    a(f"s_lshl_b32 s{R['s_st']}, s{R['s_st']}, 3")
    a(f"s_lshr_b32 s{t1}, s{t1}, 2")
    a(f"s_add_u32 s{R['s_st']}, s{R['s_st']}, s{t1}")
    if R.get("s_start") is not None:
        if _c.EXP.get("norot"): a(f"s_mov_b32 s{R['s_start']}, 0")
        else:
            a(f"s_mul_i32 s{R['s_t2']}, s{R['s_t2']}, 7")
            a(f"s_mul_i32 s{t1}, s{t1}, 10")
            a(f"s_add_u32 s{t1}, s{t1}, s{R['s_t2']}")
            a(f"s_mul_i32 s{t0}, s{t1}, 2428")
            a(f"s_lshr_b32 s{t0}, s{t0}, 16")
            a(f"s_mul_i32 s{t0}, s{t0}, 27")
            a(f"s_sub_u32 s{R['s_start']}, s{t1}, s{t0}")

def regs_p3():
    return dict(
        s_wave=40, s_l=41, s_dt=42, s_st=43, s_t0=44, s_t1=45, s_t2=46, s_cnt=47, s_slot=48,
        s_soff_h=49, s_soff_w=50, s_mb=51, s_mbbeg=52, s_mbend=53, s_delta=54, s_T=55, s_start=38,
        srd_u=60, srd_w2=64, srd_p=68, srd_out=72,
        v_lane=1, v_t0=2, v_t1=3, v_t2=4, v_hb=5, v_w=6, v_ld=24, v_tmp=32, v_acc=64, a_frag=0, lds_base=0)

def emit_p3_kernel(a, name="p3_kernel"):
    R = regs_p3()
    kernel_header(a, name)
    a(f"s_cmp_ge_u32 s2, 256")
    a(f"s_cbranch_scc1 {name}_end")
    stamp_init(a)
    stamp(a, 0)
    load_kernargs(a)
    wave_ids(a, R)
    p3_map(a, R, 2)
    a("s_waitcnt lgkmcnt(0)")
    make_srd(a, R["srd_u"], P_WS, WS_U_BYTES, WS_U)
    make_srd(a, R["srd_w2"], P_W2, W2_BYTES)
    make_srd(a, R["srd_p"], P_WS, WS_P_BYTES, WS_P)
    make_srd(a, R["srd_out"], P_OUT, OUT_BYTES)
    a(f"s_cmp_ge_u32 s{R['s_wave']}, 4")
    a(f"s_cbranch_scc1 {name}_loader")
    p3_consumer_setup(a, R)
    p3_partial_load(a, R)
    a("s_waitcnt vmcnt(0)")
    stamp(a, 1)
    p3_consumer(a, R)
    stamp(a, 2)
    p3_epilogue(a, R)
    a("s_waitcnt vmcnt(0)")
    stamp(a, 3)
    stamp_flush(a, R['s_wave'], 2)
    a("s_endpgm")
    a.label(f"{name}_loader")
    a(f"s_sub_u32 s{R['s_l']}, s{R['s_wave']}, 4")
    a(f"s_cmp_ge_u32 s{R['s_l']}, 2")
    a(f"s_cbranch_scc1 {name}_loaderB")
    for variant in range(2):
        if variant == 1: a.label(f"{name}_loaderB")
        L, n = p3_loader_setup(a, R, variant)
        stamp(a, 1)
        emit_loader_prologue(a, L, n, P3_S - 1)
        stamp(a, 2)
        emit_loader_main(a, L, n)
        a("s_barrier")
        stamp(a, 3)
        stamp_flush(a, R['s_wave'], 2)
        a("s_endpgm")
    a.label(f"{name}_end")
    a("s_endpgm")
    return kernel_desc(name, 256, 102, 184)
```

```python
import sys
import common
from common import *
import g3, p3, g2, ln, g1
from build_test import build
HDR = open("parallel_sum__sliding_local_dilated__mixer_token_mlp__prompt.s.ref").read().split("; Override launch")[0]
if __name__ == "__main__":
    common.STAMP = False
    common.EXP = {}
    t = build([ln.emit_ln_kernel, g1.emit_g1_kernel, g3.emit_g3_kernel, g2.emit_g2_kernel, p3.emit_p3_kernel],
              [("ln_kernel", 128, 512, ln.LN_LDS), ("g1_kernel", 128, 512, g1.G1_LDS), ("g3_kernel", 112, 512, g3.G3_S * g3.G3_STAGE),
               ("g2_kernel", 128, 512, g2.G2_S * g2.G2_STAGE), ("p3_kernel", 256, 512, p3.P3_S * p3.P3_STAGE)])
    out = sys.argv[1] if len(sys.argv) > 1 else "parallel_sum__sliding_local_dilated__mixer_token_mlp__prompt.s"
    open(out, "w").write(HDR + t)
```

```python
from asmlib import Asm, fix_hazards

S_, D_, F_ = 2048, 640, 1728
X_BYTES = S_ * D_ * 2
WQKV_BYTES = D_ * 3 * D_ * 2
WO_BYTES = D_ * D_ * 2
W1_BYTES = S_ * F_ * 2
W2_BYTES = F_ * S_ * 2
OUT_BYTES = S_ * D_ * 2

WS_H = 0
WS_H_BYTES = 40 * 64 * 1024
WS_U = WS_H + WS_H_BYTES
WS_U_BYTES = 40 * 54 * 1024
WS_O = WS_U + WS_U_BYTES
WS_O_BYTES = 128 * 40 * 512
WS_P = WS_O + WS_O_BYTES
WS_P_BYTES = 32 * 8 * 20 * 1024
WS_ST = WS_P + WS_P_BYTES
WS_ST_BYTES = 2048 * 8
WS_FLAGS = WS_ST + WS_ST_BYTES
WS_END = WS_FLAGS + 65536

S_WG = 2
P_X, P_WQKV, P_WO, P_BX, P_W1, P_B1, P_W2, P_B2 = 16, 18, 20, 22, 24, 26, 28, 30
P_OUT, P_DBG, P_WS = 32, 34, 36

def load_kernargs(a):
    a("s_load_dwordx16 s[16:31], s[0:1], 0")
    a("s_load_dwordx4 s[32:35], s[0:1], 64")
    a("s_load_dwordx2 s[36:37], s[0:1], 80")

def make_srd(a, srd, ptr, nbytes, base_off=0):
    if base_off:
        a(f"s_add_u32 s{srd}, s{ptr}, {base_off}")
        a(f"s_addc_u32 s{srd+1}, s{ptr+1}, 0")
    else:
        a(f"s_mov_b32 s{srd}, s{ptr}")
        a(f"s_mov_b32 s{srd+1}, s{ptr+1}")
    a(f"s_mov_b32 s{srd+2}, {nbytes}")
    a(f"s_mov_b32 s{srd+3}, 0x20000")

def srd(n): return f"s[{n}:{n+3}]"
def vr(n, w=1): return f"v{n}" if w == 1 else f"v[{n}:{n+w-1}]"
def ar(n, w=1): return f"a{n}" if w == 1 else f"a[{n}:{n+w-1}]"
def sr(n, w=1): return f"s{n}" if w == 1 else f"s[{n}:{n+w-1}]"

def kernel_header(a, name):
    a(f".globl {name}")
    a(".p2align 8")
    a(f".type {name},@function")
    a.label(name)

def kernel_desc(name, vgpr, sgpr, accum):
    return (f".amdhsa_kernel {name}\n  .amdhsa_next_free_vgpr {vgpr}\n  .amdhsa_next_free_sgpr {sgpr}\n"
            f"  .amdhsa_accum_offset {accum}\n  .amdhsa_group_segment_fixed_size 0\n  .amdhsa_kernarg_size 88\n"
            f"  .amdhsa_user_sgpr_count 2\n  .amdhsa_user_sgpr_kernarg_segment_ptr 1\n"
            f"  .amdhsa_system_sgpr_workgroup_id_x 1\n  .amdhsa_float_denorm_mode_32 3\n.end_amdhsa_kernel\n")

EXP = {}
def emit_issue(a, L, slots):
    import common as _c
    for m in ([] if _c.EXP.get("nodma") else slots):
        sl = L["slots"][m]
        a(f"s_add_u32 m0, s{L['s_mb']}, {L['m0_step'] * m}")
        if sl.get("exec") is not None:
            a(f"s_mov_b64 exec, {sr(sl['exec'], 2)}")
        else:
            a("s_nop 0")
        a(f"buffer_load_dwordx4 v{sl['voff']}, {srd(sl['srd'])}, s{sl['soff']} offen {sl.get('aux','')} lds")
        if sl.get("exec") is not None:
            a("s_mov_b64 exec, -1")

def emit_advance(a, L, which=(0, 1)):
    import common as _c
    for qi, (s, inc, end) in enumerate(L["advance"]):
        if qi in _c.EXP.get("freeze", ()) or qi not in which: continue
        a(f"s_add_u32 s{s}, s{s}, {inc}")
        if end is not None:
            a(f"s_cmp_eq_u32 s{s}, {end}")
            a(f"s_cselect_b32 s{s}, 0, s{s}")
    a(f"s_add_u32 s{L['s_mb']}, s{L['s_mb']}, {L['stage_bytes']}")
    a(f"s_cmp_eq_u32 s{L['s_mb']}, s{L['s_mbend']}")
    a(f"s_cselect_b32 s{L['s_mb']}, s{L['s_mbbeg']}, s{L['s_mb']}")

def emit_loader_init(a, L, s_l, lds_base, s_start=None):
    a(f"s_lshl_b32 s{L['s_mb']}, s{s_l}, 10")
    if lds_base: a(f"s_add_u32 s{L['s_mb']}, s{L['s_mb']}, {lds_base}")
    a(f"s_mov_b32 s{L['s_mbbeg']}, s{L['s_mb']}")
    a(f"s_add_u32 s{L['s_mbend']}, s{L['s_mb']}, {L['S'] * L['stage_bytes']}")
    for (s, inc, end) in L["advance"]:
        if s_start is None: a(f"s_mov_b32 s{s}, 0")
        else: a(f"s_mul_i32 s{s}, s{s_start}, {inc}")

def emit_loader_prologue(a, L, nslots, nstages):
    lp = a.uid("Lpro")
    a(f"s_mov_b32 s{L['s_cnt']}, {nstages}")
    a.label(lp)
    emit_issue(a, L, range(nslots))
    emit_advance(a, L)
    a(f"s_sub_u32 s{L['s_cnt']}, s{L['s_cnt']}, 1")
    a(f"s_cmp_lg_u32 s{L['s_cnt']}, 0")
    a(f"s_cbranch_scc1 {lp}")

def emit_loader_part_prologue(a, L, dep):
    sel = [m for m, sl in enumerate(L["slots"]) if bool(sl.get("dep")) == dep]
    lp = a.uid("Lpp")
    a(f"s_mov_b32 s{L['s_mb']}, s{L['s_mbbeg']}")
    a(f"s_mov_b32 s{L['s_cnt']}, {L['S'] - 1}")
    a.label(lp)
    emit_issue(a, L, sel)
    emit_advance(a, L, (0,) if dep else (1,))
    a(f"s_sub_u32 s{L['s_cnt']}, s{L['s_cnt']}, 1")
    a(f"s_cmp_lg_u32 s{L['s_cnt']}, 0")
    a(f"s_cbranch_scc1 {lp}")
    return len(sel)

def emit_loader_main(a, L, nslots, split=False):
    S, NST = L["S"], L["NST"]
    lp = a.uid("Lld")
    n_iter = NST - S + 1
    a(f"s_mov_b32 s{L['s_cnt']}, {n_iter}")
    a.label(lp)
    if split:
        nh = sum(1 for sl in L["slots"] if sl.get("dep"))
        assert n_iter >= S - 1
        go = a.uid("Lgo"); steady = a.uid("Lst")
        a(f"s_cmp_le_u32 s{L['s_cnt']}, {n_iter - (S - 1)}")
        a(f"s_cbranch_scc1 {steady}")
        for t in range(S - 1):
            nx = a.uid("Lnx")
            if t < S - 2:
                a(f"s_cmp_lg_u32 s{L['s_cnt']}, {n_iter - t}")
                a(f"s_cbranch_scc1 {nx}")
            a(f"s_waitcnt vmcnt({(S - 2 - t) * nh + t * nslots})")
            a(f"s_branch {go}")
            if t < S - 2: a.label(nx)
        a.label(steady)
        a(f"s_waitcnt vmcnt({(S - 2) * nslots})")
        a.label(go)
    else:
        a(f"s_waitcnt vmcnt({(S - 2) * nslots})")
    iter_stamp(a, L['s_cnt'])
    a("s_barrier")
    emit_issue(a, L, range(nslots))
    emit_advance(a, L)
    a(f"s_sub_u32 s{L['s_cnt']}, s{L['s_cnt']}, 1")
    a(f"s_cmp_lg_u32 s{L['s_cnt']}, 0")
    a(f"s_cbranch_scc1 {lp}")
    for j in range(S - 1):
        a(f"s_waitcnt vmcnt({(S - 2 - j) * nslots})")
        a("s_barrier")
    a("s_barrier")

def interleave(a, mfmas, reads, lead=1, every=1):
    import common as _c
    q = list(reads)
    if _c.EXP.get("noread"): q = []
    if _c.EXP.get("nomfma"): mfmas = []
    for i, m in enumerate(mfmas):
        a(m)
        if i + 1 >= lead and q and ((i + 1 - lead) % every == 0):
            a(q.pop(0))
    for r in q:
        a(r)

def emit_consumer(a, C):
    NST, S = C["NST"], C["S"]
    subs = C["subs"]; spb = C["spb"]
    s_slot, s_cnt, s_dl = C["s_slot"], C["s_cnt"], C["s_delta"]
    def adv():
        a(f"s_mov_b32 s{s_dl}, {C['stage_bytes']}")
        a(f"s_add_u32 s{s_slot}, s{s_slot}, 1")
        a(f"s_cmp_eq_u32 s{s_slot}, {S}")
        a(f"s_cselect_b32 s{s_dl}, {(-(S - 1) * C['stage_bytes']) & 0xffffffff}, s{s_dl}")
        a(f"s_cselect_b32 s{s_slot}, 0, s{s_slot}")
        for v in C["addr"]:
            a(f"v_add_u32 v{v}, s{s_dl}, v{v}")
    def sub(sb, reads=True):
        if sb.get("bar"):
            a("s_barrier")
            if reads: adv()
        interleave(a, sb["mfma"], sb["reads_next"] if reads else [], lead=C.get("lead", 1), every=C.get("every", 1))
    a(f"s_mov_b32 s{s_slot}, 0")
    a(f"s_mov_b32 s{s_cnt}, {NST // spb}")
    a("s_barrier")
    for r in C["first_reads"]:
        a(r)
    a("s_waitcnt lgkmcnt(0)")
    lp = a.uid("Lc")
    a.label(lp)
    if C.get("hook"): C["hook"](a)
    for j, sb in enumerate(subs):
        sub(sb)
        if j == len(subs) - 1:
            a(f"s_sub_u32 s{s_cnt}, s{s_cnt}, 1")
            a(f"s_cmp_lg_u32 s{s_cnt}, 0")
        a("s_waitcnt lgkmcnt(0)")
    a(f"s_cbranch_scc1 {lp}")
    if NST % spb:
        assert spb == 2 and NST % spb == 1
        for sb in subs:
            sub(sb, reads=False)
            if sb.get("bar"): break

STAMP = False
V_STAMP = 9
WS_STAMP = 64 << 20
def stamp(a, idx):
    import common as _c
    if not _c.STAMP: return
    a(f"{'s_memtime' if _c.STAMP == 2 else 's_memrealtime'} s[100:101]")
    a("s_waitcnt lgkmcnt(0)")
    a(f"v_writelane_b32 v{V_STAMP}, s100, {idx}")
def stamp_init(a):
    import common as _c
    if not _c.STAMP: return
    a(f"v_mov_b32 v{V_STAMP}, 0")
def stamp_flush(a, s_wave, vt, srd_tmp=96):
    import common as _c
    if not _c.STAMP: return
    a("s_waitcnt lgkmcnt(0) vmcnt(0)")
    make_srd(a, srd_tmp, P_WS, 256 * 8 * 256, WS_STAMP)
    a(f"s_lshl_b32 s3, s2, 3")
    a(f"s_add_u32 s3, s3, s{s_wave}")
    a(f"s_lshl_b32 s3, s3, 8")
    a(f"v_mbcnt_lo_u32_b32 v{vt}, -1, 0")
    a(f"v_mbcnt_hi_u32_b32 v{vt}, -1, v{vt}")
    a(f"v_lshlrev_b32 v{vt}, 2, v{vt}")
    a(f"buffer_store_dword v{V_STAMP}, v{vt}, {srd(srd_tmp)}, s3 offen")
    a("s_waitcnt vmcnt(0)")

V_ITS = 200
def iter_stamp(a, s_cnt):
    import common as _c
    if not _c.EXP.get("iterstamp"): return
    a("s_memtime s[98:99]")
    a("s_waitcnt lgkmcnt(0)")
    a(f"s_mov_b32 m0, s{s_cnt}")
    a(f"v_writelane_b32 v{V_ITS}, s98, m0")
def iter_flush(a, s_wave, vt):
    import common as _c
    if not _c.EXP.get("iterstamp"): return
    make_srd(a, 96, P_WS, 256 * 8 * 256, WS_STAMP + (1 << 20))
    a(f"s_lshl_b32 s3, s2, 3")
    a(f"s_add_u32 s3, s3, s{s_wave}")
    a(f"s_lshl_b32 s3, s3, 8")
    a(f"v_mbcnt_lo_u32_b32 v{vt}, -1, 0")
    a(f"v_mbcnt_hi_u32_b32 v{vt}, -1, v{vt}")
    a(f"v_lshlrev_b32 v{vt}, 2, v{vt}")
    a(f"buffer_store_dword v{V_ITS}, v{vt}, {srd(96)}, s3 offen")
    a("s_waitcnt vmcnt(0)")
```

```python
from common import *
import common as _c
from g3 import wave_ids, f2u

G1_STAGE = 49152
G1_S = 3
G1_NST = 10
XB = 18432
ARR = 72 * 64
SECB = 8 * ARR
VZ = 3 * SECB
OB = 143360
SCALE = (20 ** -0.5) * 1.4426950408889634

def g1_loader_setup(a, R, variant):
    s_l, s_rt, s_hg, vl = R["s_l"], R["s_rt"], R["s_hg"], R["v_lane"]
    t0, t1, t2 = R["s_t0"], R["s_t1"], R["s_t2"]
    V = R["v_ld"]; vt0, vt1, vt2 = R["v_t0"], R["v_t1"], R["v_t2"]; vt3 = R["v_t3"]
    slots = []
    def xslot(m):
        a(f"s_add_u32 s{t0}, s{s_l}, {4*m}")
        a(f"s_lshl_b32 s{t0}, s{t0}, 3")
        a(f"s_lshl_b32 s{t1}, s{s_rt}, 7")
        a(f"s_add_i32 s{t0}, s{t0}, s{t1}")
        a(f"s_add_i32 s{t0}, s{t0}, -16")
        a(f"v_add_u32 v{vt2}, s{t0}, v{vt0}")
        a(f"v_mul_i32_i24 v{V+m}, 1280, v{vt2}")
        a(f"v_add_u32 v{V+m}, v{V+m}, v{vt1}")
        a(f"v_cmp_gt_i32 vcc, 0, v{vt2}")
        a(f"v_cndmask_b32 v{V+m}, v{V+m}, v{vt3}, vcc")
        slots.append(dict(voff=V + m, srd=R["srd_x"], soff=R["s_soff_h"], exec=(R["s_xmask"] if m == 0 else None), dep=False))
    def wslot(m):
        a(f"s_add_i32 s{t0}, s{s_l}, {4*m - 18}")
        a(f"s_lshl_b32 s{t0}, s{t0}, 6")
        a(f"v_add_u32 v{vt0}, s{t0}, v{vl}")
        a(f"v_mul_u32_u24 v{vt1}, 2185, v{vt0}")
        a(f"v_lshrrev_b32 v{vt1}, 16, v{vt1}")
        a(f"v_mul_u32_u24 v{vt2}, 30, v{vt1}")
        a(f"v_sub_u32 v{vt0}, v{vt0}, v{vt2}")
        a(f"v_and_b32 v{vt2}, 0x33, v{vt1}")
        a(f"v_bfe_u32 v{vt3}, v{vt1}, 2, 1")
        a(f"v_lshl_or_b32 v{vt2}, v{vt3}, 3, v{vt2}")
        a(f"v_bfe_u32 v{vt3}, v{vt1}, 3, 1")
        a(f"v_lshl_or_b32 v{vt2}, v{vt3}, 2, v{vt2}")
        a(f"v_mul_u32_u24 v{V+m}, 3840, v{vt2}")
        a(f"v_mul_u32_u24 v{vt1}, 26, v{vt0}")
        a(f"v_lshrrev_b32 v{vt1}, 8, v{vt1}")
        a(f"v_mul_u32_u24 v{vt2}, {1280 - 160}, v{vt1}")
        a(f"v_lshl_add_u32 v{vt2}, v{vt0}, 4, v{vt2}")
        a(f"s_mul_i32 s{t0}, s{s_hg}, 160")
        a(f"v_add3_u32 v{V+m}, v{V+m}, v{vt2}, s{t0}")
        slots.append(dict(voff=V + m, srd=R["srd_wq"], soff=R["s_soff_w"], dep=False))
    a(f"v_lshrrev_b32 v{vt0}, 3, v{vl}")
    a(f"s_and_b32 s{t0}, s{s_l}, 1")
    a(f"s_lshl_b32 s{t0}, s{t0}, 2")
    a(f"v_lshrrev_b32 v{vt1}, 1, v{vt0}")
    a(f"v_or_b32 v{vt1}, s{t0}, v{vt1}")
    a(f"v_and_b32 v{vt2}, 7, v{vl}")
    a(f"v_xor_b32 v{vt1}, v{vt1}, v{vt2}")
    a(f"v_lshlrev_b32 v{vt1}, 4, v{vt1}")
    a(f"v_mov_b32 v{vt3}, 0x7ff00000")
    nx = 5 if variant == 0 else 4
    for m in range(nx): xslot(m)
    for m in range(nx, 12): wslot(m)
    a(f"s_cmp_eq_u32 s{s_l}, 0")
    a(f"s_cselect_b32 s{R['s_xmask']}, 0xffffff00, -1")
    a(f"s_mov_b32 s{R['s_xmask']+1}, -1")
    L = dict(S=G1_S, NST=G1_NST, stage_bytes=G1_STAGE, slots=slots, m0_step=4096,
             advance=[(R["s_soff_h"], 128, 128 * G1_NST), (R["s_soff_w"], 64 * 3840, 64 * 3840 * G1_NST)],
             s_mb=R["s_mb"], s_mbbeg=R["s_mbbeg"], s_mbend=R["s_mbend"], s_cnt=R["s_cnt"])
    emit_loader_init(a, L, s_l, R["lds_base"], R.get("s_start"))
    return L, 12

def acc1(R, q, ts): return R["v_acc"] + (q * 9 + ts) * 4

def g1_consumer_setup(a, R):
    vl, w = R["v_lane"], R["s_wave"]
    vt0, vt1, vt2 = R["v_t0"], R["v_t1"], R["v_t2"]
    X, W = R["v_x"], R["v_w"]; t0 = R["s_t0"]
    a(f"v_and_b32 v{vt0}, 15, v{vl}")
    a(f"v_lshrrev_b32 v{vt1}, 4, v{vl}")
    a(f"v_lshrrev_b32 v{vt2}, 1, v{vt0}")
    a(f"v_xor_b32 v{X}, v{vt1}, v{vt2}")
    a(f"v_lshlrev_b32 v{X}, 4, v{X}")
    a(f"v_lshl_add_u32 v{X}, v{vt0}, 7, v{X}")
    if R["lds_base"]: a(f"v_add_u32 v{X}, {R['lds_base']}, v{X}")
    a(f"v_xor_b32 v{X+1}, 64, v{X}")
    a(f"v_lshrrev_b32 v{vt2}, 2, v{vt0}")
    a(f"v_and_b32 v{W}, 1, v{vt1}")
    a(f"v_lshl_add_u32 v{vt2}, v{W}, 2, v{vt2}")
    a(f"v_lshrrev_b32 v{W}, 1, v{vt1}")
    a(f"v_lshl_add_u32 v{vt2}, v{W}, 4, v{vt2}")
    a(f"v_mul_u32_u24 v{W}, 480, v{vt2}")
    a(f"v_and_b32 v{vt0}, 3, v{vt0}")
    a(f"v_lshl_add_u32 v{W}, v{vt0}, 3, v{W}")
    a(f"s_lshl_b32 s{t0}, s{w}, 7")
    a(f"s_add_u32 s{t0}, s{t0}, {XB + R['lds_base']}")
    a(f"v_add_u32 v{W}, s{t0}, v{W}")
    sk = a.uid("Lones")
    a(f"s_cmp_lg_u32 s{w}, 0")
    a(f"s_cbranch_scc1 {sk}")
    a(f"v_lshlrev_b32 v{vt0}, 2, v{vl}")
    a(f"v_mov_b32 v{vt1}, 0x3f803f80")
    a("s_mov_b64 exec, 0xffffffff")
    for sl in range(G1_S):
        a(f"v_add_u32 v{vt2}, {R['lds_base'] + sl * G1_STAGE}, v{vt0}")
        a(f"ds_write_b32 v{vt2}, v{vt1}")
    a("s_mov_b64 exec, -1")
    a("s_waitcnt lgkmcnt(0)")
    a.label(sk)
    for q in range(4):
        for ts in range(9):
            k = acc1(R, q, ts)
            a(f"v_mov_b64 v[{k}:{k+1}], 0")
            a(f"v_mov_b64 v[{k+2}:{k+3}], 0")

def g1_stats_load(a, R):
    vl = R["v_lane"]; ST = R["v_st"]; vt0 = R["v_t0"]; t0 = R["s_t0"]
    a(f"s_lshl_b32 s{t0}, s{R['s_rt']}, 7")
    a(f"s_add_i32 s{t0}, s{t0}, -16")
    a(f"v_and_b32 v{vt0}, 15, v{vl}")
    a(f"v_add_u32 v{vt0}, s{t0}, v{vt0}")
    a(f"v_lshlrev_b32 v{vt0}, 3, v{vt0}")
    for ts in range(9):
        a(f"buffer_load_dwordx2 v[{ST+2*ts}:{ST+2*ts+1}], v{vt0}, {srd(R['srd_st'])}, 0 offen {R.get('aux_h','')}")
        if ts < 8: a(f"v_add_u32 v{vt0}, 128, v{vt0}")

def g1_consumer(a, R):
    F = R["a_frag"]; X, W = R["v_x"], R["v_w"]
    def fa(s, q): return F + s * 16 + q * 4
    def fb(ts): return F + 32 + ts * 4
    def rA(s, k):
        return [f"ds_read_b64_tr_b16 {ar(fa(s,q)+2*rho,2)}, v{W} offset:{k*15360 + rho*3840 + q*32}" for q in range(4) for rho in range(2)]
    def rB(k, tss):
        return [f"ds_read_b128 {ar(fb(ts),4)}, v{X+k} offset:{ts*2048}" for ts in tss]
    def mf(s, tss):
        return [f"v_mfma_f32_16x16x32_bf16 {vr(acc1(R,q,ts),4)}, {ar(fa(s,q),4)}, {ar(fb(ts),4)}, {vr(acc1(R,q,ts),4)}"
                for ts in tss for q in range(4)]
    lo, hi = range(0, 5), range(5, 9)
    def mix(A, B):
        return [B[0]] + A + B[1:]
    C = dict(NST=G1_NST, S=G1_S, stage_bytes=G1_STAGE, s_slot=R["s_slot"], s_cnt=R["s_cnt"], s_delta=R["s_delta"], spb=1,
             addr=[X, X + 1, W], first_reads=mix(rA(0, 0), rB(0, lo)), hook=R.get("hook"),
             subs=[dict(mfma=mf(0, lo), reads_next=rB(0, hi)),
                   dict(mfma=mf(0, hi), reads_next=mix(rA(1, 1), rB(1, lo))),
                   dict(mfma=mf(1, lo), reads_next=rB(1, hi)),
                   dict(mfma=mf(1, hi), reads_next=mix(rA(0, 0), rB(0, lo)), bar=True)])
    emit_consumer(a, C)

def g1_qkv_write(a, R):
    vl, w = R["v_lane"], R["s_wave"]; ST = R["v_st"]; T = R["v_tmp"]
    vt0, vt1, vt2, vt3 = R["v_t0"], R["v_t1"], R["v_t2"], R["v_t3"]; t0, t1 = R["s_t0"], R["s_t1"]
    a("s_waitcnt vmcnt(0) lgkmcnt(0)")
    for ts in range(9):
        a(f"v_xor_b32 v{ST+2*ts}, 0x80000000, v{ST+2*ts}")
    a(f"v_and_b32 v{vt0}, 15, v{vl}")
    a(f"v_lshrrev_b32 v{vt1}, 4, v{vl}")
    a(f"v_and_b32 v{vt2}, 1, v{vt0}")
    a(f"v_mul_u32_u24 v{T+8}, {ARR}, v{vt2}")
    a(f"v_lshrrev_b32 v{vt0}, 1, v{vt0}")
    a(f"v_lshl_add_u32 v{T+8}, v{vt0}, 6, v{T+8}")
    a(f"v_lshlrev_b32 v{T+9}, 1, v{vt2}")
    CS, W0 = T, T + 4
    AE, AO = T + 10, T + 11
    for q in range(4):
        sk = None
        if q == 3:
            sk = a.uid("Lq3")
            a(f"s_cmp_eq_u32 s{w}, 3")
            a(f"s_cbranch_scc1 {sk}")
        a(f"s_lshl_b32 s{t0}, s{w}, 4")
        a(f"s_add_u32 s{t0}, s{t0}, {4*q}")
        a(f"v_add_u32 v{vt0}, s{t0}, v{vt1}")
        a(f"v_mul_u32_u24 v{vt2}, 13, v{vt0}")
        a(f"v_lshrrev_b32 v{vt2}, 8, v{vt2}")
        a(f"v_mul_u32_u24 v{AE}, {SECB}, v{vt2}")
        a(f"v_mul_u32_u24 v{vt2}, 20, v{vt2}")
        a(f"v_sub_u32 v{vt0}, v{vt0}, v{vt2}")
        a(f"v_mul_u32_u24 v{vt2}, 52, v{vt0}")
        a(f"v_lshrrev_b32 v{vt2}, 8, v{vt2}")
        a(f"v_mul_u32_u24 v{vt3}, {2*ARR}, v{vt2}")
        a(f"v_add3_u32 v{AE}, v{AE}, v{vt3}, v{T+8}")
        a(f"v_mul_u32_u24 v{vt2}, 5, v{vt2}")
        a(f"v_sub_u32 v{vt0}, v{vt0}, v{vt2}")
        a(f"v_lshrrev_b32 v{vt2}, 1, v{vt0}")
        a(f"v_xor_b32 v{vt2}, v{vt2}, v{T+9}")
        a(f"v_lshl_add_u32 v{AE}, v{vt2}, 4, v{AE}")
        a(f"v_and_b32 v{vt0}, 1, v{vt0}")
        a(f"v_lshl_add_u32 v{AE}, v{vt0}, 3, v{AE}")
        if R["lds_base"]: a(f"v_add_u32 v{AE}, {R['lds_base']}, v{AE}")
        a(f"v_xor_b32 v{AO}, 32, v{AE}")
        k0 = acc1(R, q, 0)
        for r in range(4):
            a(f"v_mov_b32_dpp v{CS+r}, v{k0+r} row_newbcast:0 row_mask:0xf bank_mask:0xf")
        for ts in range(9):
            k = acc1(R, q, ts); st = ST + 2 * ts
            wk = W0 + 2 * (ts & 1)
            a(f"v_pk_fma_f32 v[{k}:{k+1}], v[{CS}:{CS+1}], v[{st}:{st+1}], v[{k}:{k+1}] op_sel_hi:[1,0,1]")
            a(f"v_pk_fma_f32 v[{k+2}:{k+3}], v[{CS+2}:{CS+3}], v[{st}:{st+1}], v[{k+2}:{k+3}] op_sel_hi:[1,0,1]")
            a(f"v_pk_mul_f32 v[{k}:{k+1}], v[{k}:{k+1}], v[{st}:{st+1}] op_sel:[0,1] op_sel_hi:[1,1]")
            a(f"v_pk_mul_f32 v[{k+2}:{k+3}], v[{k+2}:{k+3}], v[{st}:{st+1}] op_sel:[0,1] op_sel_hi:[1,1]")
            a(f"v_cvt_pk_bf16_f32 v{wk}, v{k}, v{k+1}")
            a(f"v_cvt_pk_bf16_f32 v{wk+1}, v{k+2}, v{k+3}")
            a(f"ds_write_b64 v{AE if ts % 2 == 0 else AO}, v[{wk}:{wk+1}] offset:{ts*512}")
        if sk: a.label(sk)
    a("s_waitcnt lgkmcnt(0)")

def g1_pad_zero(a, R):
    vl = R["v_lane"]; vt0, vt1, vt2 = R["v_t0"], R["v_t1"], R["v_t2"]; Z = R["v_z"]; t0 = R["s_t0"]
    for r in range(4): a(f"v_mov_b32 v{Z+r}, 0")
    a(f"s_lshl_b32 s{t0}, s{R['s_l']}, 6")
    a(f"v_add_u32 v{vt0}, s{t0}, v{vl}")
    a(f"v_bfe_u32 v{vt1}, v{vt0}, 3, 1")
    a(f"v_lshlrev_b32 v{vt1}, 5, v{vt1}")
    a(f"v_lshlrev_b32 v{vt0}, 6, v{vt0}")
    if R["lds_base"]: a(f"v_add_u32 v{vt0}, {R['lds_base']}, v{vt0}")
    a(f"v_xor_b32 v{vt2}, 32, v{vt1}")
    a(f"v_add_u32 v{vt2}, v{vt2}, v{vt0}")
    a(f"v_xor_b32 v{vt1}, 48, v{vt1}")
    a(f"v_add_u32 v{vt1}, v{vt1}, v{vt0}")
    sk = a.uid("Lpz")
    for m in range(5):
        if m == 4:
            a(f"s_cmp_ge_u32 s{R['s_l']}, 2")
            a(f"s_cbranch_scc1 {sk}")
            a(f"v_add_u32 v{vt2}, 65536, v{vt2}")
            a(f"v_add_u32 v{vt1}, 65536, v{vt1}")
        mo = (m % 4) * 16384
        a(f"ds_write_b64 v{vt2}, v[{Z}:{Z+1}] offset:{mo + 8}")
        a(f"ds_write_b128 v{vt1}, v[{Z}:{Z+3}] offset:{mo}")
    a.label(sk)
    sk2 = a.uid("Lpz")
    a(f"s_cmp_lg_u32 s{R['s_l']}, 3")
    a(f"s_cbranch_scc1 {sk2}")
    a(f"v_lshlrev_b32 v{vt0}, 3, v{vl}")
    a(f"v_add_u32 v{vt0}, {VZ + R['lds_base']}, v{vt0}")
    a(f"ds_write_b64 v{vt0}, v[{Z}:{Z+1}]")
    a.label(sk2)
    a("s_waitcnt lgkmcnt(0)")

def g1_attention(a, R):
    vl, w = R["v_lane"], R["s_wave"]; t0, t1, t2 = R["s_t0"], R["s_t1"], R["s_t2"]
    B = R["v_att"]
    vi, vg, vq, vk, vv, vo0, vo1, t = B, B + 1, B + 2, B + 3, B + 4, B + 5, B + 6, B + 7
    QF, KF0, KF1, VF = B + 12, B + 16, B + 20, B + 24
    S, PF, O = B + 32, B + 40, B + 44
    mx, tm = B + 52, B + 53
    M = R["s_mask"]
    MW = R["s_maskw"]
    a(f"v_and_b32 v{vi}, 15, v{vl}")
    a(f"v_lshrrev_b32 v{vg}, 4, v{vl}")
    a(f"s_and_b32 s{t0}, s{w}, 1")
    a(f"s_mul_i32 s{t1}, s{w}, {ARR}")
    a(f"s_add_u32 s{t1}, s{t1}, {R['lds_base']}")
    a(f"v_lshrrev_b32 v{t}, 3, v{vi}")
    a(f"v_add_u32 v{t}, s{t0}, v{t}")
    a(f"v_and_b32 v{t}, 1, v{t}")
    a(f"v_lshlrev_b32 v{t}, 1, v{t}")
    a(f"v_xor_b32 v{t+1}, v{t}, v{vg}")
    a(f"v_lshlrev_b32 v{vk}, 4, v{t+1}")
    a(f"v_lshl_add_u32 v{vk}, v{vi}, 6, v{vk}")
    a(f"v_add_u32 v{vk}, s{t1}, v{vk}")
    a(f"v_xor_b32 v{vq}, 32, v{vk}")
    a(f"v_add_u32 v{vq}, {8*64}, v{vq}")
    a(f"v_add_u32 v{vk}, {SECB}, v{vk}")
    a(f"v_lshrrev_b32 v{t}, 1, v{vg}")
    a(f"v_add_u32 v{t}, s{t0}, v{t}")
    a(f"v_and_b32 v{t}, 1, v{t}")
    a(f"v_lshlrev_b32 v{t}, 5, v{t}")
    a(f"v_lshrrev_b32 v{t+1}, 2, v{vi}")
    a(f"v_lshl_add_u32 v{t+1}, v{vg}, 2, v{t+1}")
    a(f"v_lshl_add_u32 v{vv}, v{t+1}, 6, v{t}")
    a(f"v_and_b32 v{t+1}, 3, v{vi}")
    a(f"v_lshl_add_u32 v{vv}, v{t+1}, 3, v{vv}")
    a(f"s_add_u32 s{t2}, s{t1}, {2*SECB}")
    a(f"v_add_u32 v{vv}, s{t2}, v{vv}")
    a(f"v_xor_b32 v{t+4}, 32, v{vv}")
    a(f"s_lshr_b32 s{t2}, s{w}, 1")
    a(f"s_mul_i32 s{t2}, s{t2}, 5")
    a(f"v_lshlrev_b32 v{t}, 1, v{vi}")
    a(f"v_add_u32 v{t}, s{t0}, v{t}")
    a(f"v_and_b32 v{t}, 15, v{t}")
    a(f"v_lshrrev_b32 v{t+1}, 3, v{vi}")
    a(f"v_mul_u32_u24 v{t+1}, 320, v{t+1}")
    a(f"v_add_u32 v{t}, v{t}, v{t+1}")
    for dst, k4src in ((vo0, "g"), (vo1, "4")):
        if k4src == "g": a(f"v_add_u32 v{t+1}, s{t2}, v{vg}")
        else:
            a(f"s_add_u32 s{t2}, s{t2}, 4")
            a(f"v_mov_b32 v{t+1}, s{t2}")
        a(f"v_lshrrev_b32 v{t+2}, 2, v{t+1}")
        a(f"v_and_b32 v{t+1}, 3, v{t+1}")
        a(f"v_lshlrev_b32 v{t+1}, 4, v{t+1}")
        a(f"v_lshl_add_u32 v{t+1}, v{t+2}, 6, v{t+1}")
        a(f"v_add_u32 v{dst}, v{t}, v{t+1}")
        a(f"v_lshlrev_b32 v{dst}, 3, v{dst}")
        a(f"v_add_u32 v{dst}, {OB + R['lds_base']}, v{dst}")
    a(f"v_lshlrev_b32 v{t}, 2, v{vg}")
    a(f"v_sub_u32 v{t}, v{t}, v{vi}")
    for tt in range(2):
        for r in range(4):
            a(f"v_add_u32 v{t+1}, {16*tt + r - 1}, v{t}")
            a(f"v_cmp_gt_u32 s[{M+2*(4*tt+r)}:{M+2*(4*tt+r)+1}], 8, v{t+1}")
    a("s_nop 3")
    a(f"s_cmp_eq_u32 s{R['s_rt']}, 0")
    a(f"s_cselect_b32 s{t0}, 0, -1")
    for r in range(4):
        a(f"s_and_b32 s{MW+2*r}, s{M+2*r}, s{t0}")
        a(f"s_mov_b32 s{MW+2*r+1}, s{M+2*r+1}")
    a(f"v_mov_b32 v{t+2}, 0xff800000")
    a(f"s_mov_b32 s{t1}, {hex(f2u(SCALE))}")
    a(f"s_mov_b32 s{R['s_cnt']}, 4")
    lp = a.uid("Latt")
    a.label(lp)
    a(f"ds_read_b128 v[{QF}:{QF+3}], v{vq}")
    a(f"ds_read_b128 v[{KF0}:{KF0+3}], v{vk}")
    a(f"ds_read_b128 v[{KF1}:{KF1+3}], v{vk} offset:1024")
    for u, av in ((0, vv), (1, t + 4)):
        for rho in range(2):
            a(f"ds_read_b64_tr_b16 v[{VF+4*u+2*rho}:{VF+4*u+2*rho+1}], v{av} offset:{rho*1024}")
    a("s_waitcnt lgkmcnt(4)")
    a(f"v_mfma_f32_16x16x32_bf16 v[{S}:{S+3}], v[{KF0}:{KF0+3}], v[{QF}:{QF+3}], 0")
    a(f"v_mfma_f32_16x16x32_bf16 v[{S+4}:{S+7}], v[{KF1}:{KF1+3}], v[{QF}:{QF+3}], 0")
    for v in (vq, vk, vv, t + 4):
        a(f"v_add_u32 v{v}, 1024, v{v}")
    for r in range(4):
        a(f"v_cndmask_b32 v{S+r}, v{t+2}, v{S+r}, s[{MW+2*r}:{MW+2*r+1}]")
    for r in range(4):
        a(f"v_cndmask_b32 v{S+4+r}, v{t+2}, v{S+4+r}, s[{M+2*(4+r)}:{M+2*(4+r)+1}]")
    a(f"v_max3_f32 v{mx}, v{S}, v{S+1}, v{S+2}")
    a(f"v_max3_f32 v{mx}, v{mx}, v{S+3}, v{S+4}")
    a(f"v_max3_f32 v{mx}, v{mx}, v{S+5}, v{S+6}")
    a(f"v_max_f32 v{mx}, v{mx}, v{S+7}")
    for sw in ("v_permlane16_swap_b32", "v_permlane32_swap_b32"):
        a(f"v_mov_b32 v{tm}, v{mx}")
        a(f"{sw} v{mx}, v{tm}")
        a(f"v_max_f32 v{mx}, v{mx}, v{tm}")
    a(f"v_mul_f32 v{mx}, s{t1}, v{mx}")
    for r in range(8):
        a(f"v_fma_f32 v{S+r}, v{S+r}, s{t1}, -v{mx}")
    for r in range(8):
        a(f"v_exp_f32 v{S+r}, v{S+r}")
    a(f"v_pk_add_f32 v[{O}:{O+1}], v[{S}:{S+1}], v[{S+2}:{S+3}]")
    a(f"v_pk_add_f32 v[{O+2}:{O+3}], v[{S+4}:{S+5}], v[{S+6}:{S+7}]")
    a(f"v_pk_add_f32 v[{O}:{O+1}], v[{O}:{O+1}], v[{O+2}:{O+3}]")
    a(f"v_add_f32 v{mx}, v{O}, v{O+1}")
    for sw in ("v_permlane16_swap_b32", "v_permlane32_swap_b32"):
        a(f"v_mov_b32 v{tm}, v{mx}")
        a(f"{sw} v{mx}, v{tm}")
        a(f"v_add_f32 v{mx}, v{mx}, v{tm}")
    a(f"v_rcp_f32 v{mx}, v{mx}")
    a("s_nop 0")
    for r in range(0, 8, 2):
        a(f"v_pk_mul_f32 v[{S+r}:{S+r+1}], v[{S+r}:{S+r+1}], v[{mx}:{mx+1}] op_sel_hi:[1,0]")
    for r in range(4):
        a(f"v_cvt_pk_bf16_f32 v{PF+r}, v{S+2*r}, v{S+2*r+1}")
    a("s_waitcnt lgkmcnt(0)")
    a(f"v_mfma_f32_16x16x32_bf16 v[{O}:{O+3}], v[{VF}:{VF+3}], v[{PF}:{PF+3}], 0")
    a(f"v_mfma_f32_16x16x32_bf16 v[{O+4}:{O+7}], v[{VF+4}:{VF+7}], v[{PF}:{PF+3}], 0")
    for r in range(4):
        a(f"s_mov_b64 s[{MW+2*r}:{MW+2*r+1}], s[{M+2*r}:{M+2*r+1}]")
    a(f"s_sub_u32 s{R['s_cnt']}, s{R['s_cnt']}, 1")
    a(f"v_cvt_pk_bf16_f32 v{PF}, v{O}, v{O+1}")
    a(f"v_cvt_pk_bf16_f32 v{PF+1}, v{O+2}, v{O+3}")
    a(f"v_cvt_pk_bf16_f32 v{PF+2}, v{O+4}, v{O+5}")
    a(f"v_cvt_pk_bf16_f32 v{PF+3}, v{O+6}, v{O+7}")
    a(f"ds_write_b64 v{vo0}, v[{PF}:{PF+1}]")
    a("s_mov_b64 exec, 0xffff")
    a(f"ds_write_b64 v{vo1}, v[{PF+2}:{PF+3}]")
    a("s_mov_b64 exec, -1")
    a(f"v_add_u32 v{vo0}, 5120, v{vo0}")
    a(f"v_add_u32 v{vo1}, 5120, v{vo1}")
    a(f"s_cmp_lg_u32 s{R['s_cnt']}, 0")
    a(f"s_cbranch_scc1 {lp}")
    a("s_waitcnt lgkmcnt(0)")

def g1_o_store(a, R):
    B = R["v_att"]; t0, t1 = R["s_t0"], R["s_t1"]
    c, g, l = B, B + 1, B + 2; D = B + 12
    a(f"s_lshl_b32 s{t0}, s{R['s_rt']}, 3")
    a(f"s_mul_i32 s{t0}, s{t0}, {40*512}")
    a(f"s_mul_i32 s{t1}, s{R['s_hg']}, {5*512}")
    a(f"s_add_u32 s{t0}, s{t0}, s{t1}")
    a(f"v_and_b32 v{c}, 0xff, v0")
    a(f"v_lshlrev_b32 v{l}, 4, v{c}")
    a(f"v_add_u32 v{l}, {OB + R['lds_base']}, v{l}")
    for m in range(5):
        a(f"ds_read_b128 v[{D+4*m}:{D+4*m+3}], v{l} offset:{m*4096}")
    for m in range(5):
        a(f"v_add_u32 v{l}, {256*m}, v{c}")
        a(f"v_mul_u32_u24 v{g}, 3277, v{l}")
        a(f"v_lshrrev_b32 v{g}, 19, v{g}")
        a(f"v_mul_u32_u24 v{B+3}, 160, v{g}")
        a(f"v_sub_u32 v{l}, v{l}, v{B+3}")
        a(f"v_mul_u32_u24 v{g}, {40*512}, v{g}")
        a(f"v_lshl_add_u32 v{B+4+m}, v{l}, 4, v{g}")
    for m in range(5):
        a(f"s_waitcnt lgkmcnt({4-m})")
        a(f"buffer_store_dwordx4 v[{D+4*m}:{D+4*m+3}], v{B+4+m}, {srd(R['srd_o'])}, s{t0} offen {R.get('aux_st','')}")

def g1_map(a, R, s_id):
    t0, t1 = R['s_t0'], R['s_t1']
    a(f"s_and_b32 s{t0}, s{s_id}, 7")
    a(f"s_lshr_b32 s{t1}, s{s_id}, 3")
    a(f"s_and_b32 s{R['s_hg']}, s{t0}, 1")
    a(f"s_lshl_b32 s{R['s_hg']}, s{R['s_hg']}, 2")
    a(f"s_and_b32 s{R['s_t2']}, s{t1}, 3")
    a(f"s_add_u32 s{R['s_hg']}, s{R['s_hg']}, s{R['s_t2']}")
    a(f"s_lshr_b32 s{R['s_rt']}, s{t0}, 1")
    a(f"s_lshl_b32 s{R['s_rt']}, s{R['s_rt']}, 2")
    a(f"s_lshr_b32 s{t1}, s{t1}, 2")
    a(f"s_add_u32 s{R['s_rt']}, s{R['s_rt']}, s{t1}")
    if R.get("s_start") is not None:
        a(f"s_lshl_b32 s{R['s_t2']}, s{R['s_t2']}, 1")
        a(f"s_mul_i32 s{t1}, s{t1}, 3")
        a(f"s_add_u32 s{t1}, s{t1}, s{R['s_t2']}")
        a(f"s_cmp_ge_u32 s{t1}, 10")
        a(f"s_cselect_b32 s{t0}, 10, 0")
        a(f"s_sub_u32 s{R['s_start']}, s{t1}, s{t0}")
        if _c.EXP.get("norot"): a(f"s_mov_b32 s{R['s_start']}, 0")

def regs_g1():
    return dict(
        s_wave=40, s_l=41, s_hg=42, s_rt=43, s_t0=44, s_t1=45, s_t2=46, s_cnt=47, s_slot=48,
        s_soff_h=49, s_soff_w=50, s_mb=51, s_mbbeg=52, s_mbend=53, s_delta=54, s_start=38, s_xmask=56,
        srd_x=60, srd_wq=64, srd_st=68, srd_o=72, s_mask=6 - 6 + 4, s_maskw=0,
        v_lane=1, v_t0=2, v_t1=3, v_t2=4, v_t3=5, v_x=6, v_w=8, v_st=10, v_tmp=28, v_z=28, v_ld=10, v_acc=40, v_att=44,
        a_frag=0, lds_base=0)

G1_LDS = 163840

def emit_g1_body(a, R, name):
    a(f"s_cmp_ge_u32 s{R['s_wave']}, 4")
    a(f"s_cbranch_scc1 {name}_loader")
    g1_stats_load(a, R)
    g1_consumer_setup(a, R)
    stamp(a, 1)
    g1_consumer(a, R)
    stamp(a, 2)
    g1_qkv_write(a, R)
    stamp(a, 3)
    a(f"s_branch {name}_att")
    a.label(f"{name}_loader")
    a(f"s_sub_u32 s{R['s_l']}, s{R['s_wave']}, 4")
    a(f"s_cmp_ge_u32 s{R['s_l']}, 2")
    a(f"s_cbranch_scc1 {name}_loaderB")
    for variant in range(2):
        if variant == 1: a.label(f"{name}_loaderB")
        L, n = g1_loader_setup(a, R, variant)
        emit_loader_prologue(a, L, n, G1_S - 1)
        emit_loader_main(a, L, n)
        if variant == 0: a(f"s_branch {name}_pad")
    a.label(f"{name}_pad")
    g1_pad_zero(a, R)
    a.label(f"{name}_att")
    a("s_barrier")
    if _c.EXP.get("dumplds"):
        make_srd(a, 96, P_WS, 128 * 131072, 128 << 20)
        a("s_lshl_b32 s3, s2, 17")
        a("v_and_b32 v44, 0x3ff, v0")
        a("v_lshlrev_b32 v44, 4, v44")
        for m in range(16):
            a("ds_read_b128 v[48:51], v44")
            a("s_waitcnt lgkmcnt(0)")
            a("buffer_store_dwordx4 v[48:51], v44, s[96:99], s3 offen")
            a("v_add_u32 v44, 8192, v44")
            a("s_nop 1")
        a("s_waitcnt vmcnt(0)")
        a("s_barrier")
    g1_attention(a, R)
    a("s_barrier")
    stamp(a, 4)
    sk = a.uid("Lost")
    a(f"s_cmp_ge_u32 s{R['s_wave']}, 4")
    a(f"s_cbranch_scc1 {sk}")
    g1_o_store(a, R)
    a.label(sk)

def emit_g1_kernel(a, name="g1_kernel"):
    R = regs_g1()
    R["s_mask"] = 4
    R["s_maskw"] = 20
    kernel_header(a, name)
    a(f"s_cmp_ge_u32 s2, 128")
    a(f"s_cbranch_scc1 {name}_end")
    stamp_init(a)
    stamp(a, 0)
    load_kernargs(a)
    wave_ids(a, R)
    g1_map(a, R, 2)
    a("s_waitcnt lgkmcnt(0)")
    make_srd(a, R["srd_x"], P_X, X_BYTES)
    make_srd(a, R["srd_wq"], P_WQKV, WQKV_BYTES)
    make_srd(a, R["srd_st"], P_WS, WS_ST_BYTES, WS_ST)
    make_srd(a, R["srd_o"], P_WS, WS_O_BYTES, WS_O)
    emit_g1_body(a, R, name)
    a("s_waitcnt vmcnt(0)")
    stamp(a, 5)
    stamp_flush(a, R['s_wave'], 2)
    a.label(f"{name}_end")
    a("s_endpgm")
    return kernel_desc(name, 256, 102, 184)
```

```python
from common import *
import common as _c
from g3 import wave_ids, f2u

LN_PITCH = 1312
LN_LDS = 16 * LN_PITCH + 128

def allreduce32(a, v, tmp):
    for r in (8, 4, 2, 1):
        a(f"v_add_f32_dpp v{v}, v{v}, v{v} row_ror:{r} row_mask:0xf bank_mask:0xf")
    a(f"v_mov_b32 v{tmp}, v{v}")
    a(f"v_permlane16_swap_b32 v{v}, v{tmp}")
    a(f"v_add_f32 v{v}, v{v}, v{tmp}")

def sum20(a, X, dst, tmp, sq=False):
    if sq:
        a(f"v_pk_mul_f32 v[{tmp}:{tmp+1}], v[{X}:{X+1}], v[{X}:{X+1}]")
        for i in range(2, 20, 2):
            a(f"v_pk_fma_f32 v[{tmp}:{tmp+1}], v[{X+i}:{X+i+1}], v[{X+i}:{X+i+1}], v[{tmp}:{tmp+1}]")
    else:
        a(f"v_pk_add_f32 v[{tmp}:{tmp+1}], v[{X}:{X+1}], v[{X+2}:{X+3}]")
        for i in range(4, 20, 2):
            a(f"v_pk_add_f32 v[{tmp}:{tmp+1}], v[{tmp}:{tmp+1}], v[{X+i}:{X+i+1}]")
    a(f"v_add_f32 v{dst}, v{tmp}, v{tmp+1}")

def unpack(a, X, P):
    for i in range(10):
        a(f"v_lshlrev_b32 v{X+2*i}, 16, v{P+i}")
        a(f"v_and_b32 v{X+2*i+1}, 0xffff0000, v{P+i}")

def normalize(a, R, X, mean_out, rstd_out):
    T = R["v_lt"]; S = R["v_ls"]
    sum20(a, X, S, T)
    allreduce32(a, S, T)
    a(f"v_mul_f32 v{mean_out}, {hex(f2u(1.0/640))}, v{S}")
    a(f"v_mov_b32 v{mean_out+1}, v{mean_out}")
    for i in range(0, 20, 2):
        a(f"v_pk_add_f32 v[{X+i}:{X+i+1}], v[{X+i}:{X+i+1}], v[{mean_out}:{mean_out+1}] neg_lo:[0,1] neg_hi:[0,1]")
    sum20(a, X, S, T, sq=True)
    allreduce32(a, S, T)
    a(f"v_mov_b32 v{T}, {hex(f2u(1e-5))}")
    a(f"v_fmac_f32 v{T}, {hex(f2u(1.0/640))}, v{S}")
    a(f"v_rsq_f32 v{rstd_out}, v{T}")
    a("s_nop 0")
    a(f"v_mov_b32 v{rstd_out+1}, v{rstd_out}")

def ln_loads(a, R, s_row0):
    vl = R["v_lane"]; P = R["v_lp"]; A = R["v_la"]; t0 = R["s_t0"]
    a(f"s_lshl_b32 s{t0}, s{R['s_wave']}, 1")
    a(f"s_add_u32 s{t0}, s{t0}, s{s_row0}")
    a(f"v_lshrrev_b32 v{A}, 5, v{vl}")
    a(f"v_add_u32 v{A+1}, s{t0}, v{A}")
    a(f"v_mul_u32_u24 v{A}, 1280, v{A+1}")
    a(f"v_and_b32 v{R['v_t0']}, 31, v{vl}")
    a(f"v_lshl_add_u32 v{A}, v{R['v_t0']}, 3, v{A}")
    for m in range(5):
        a(f"buffer_load_dwordx2 v[{P+2*m}:{P+2*m+1}], v{A}, {srd(R['srd_x'])}, 0 offen offset:{m*256}")

def ln_compute(a, R):
    vl = R["v_lane"]; P = R["v_lp"]; X = R["v_lx"]; M = R["v_lm"]
    t0 = R["s_t0"]; vt0, vt1 = R["v_t0"], R["v_t1"]
    unpack(a, X, P)
    normalize(a, R, X, M, M + 2)
    a(f"v_mov_b32 v{M+1}, v{M+2}")
    for i in range(0, 20, 2):
        a(f"v_pk_mul_f32 v[{X+i}:{X+i+1}], v[{X+i}:{X+i+1}], v[{M+2}:{M+3}]")
    for i in range(10):
        a(f"v_cvt_pk_bf16_f32 v{P+i}, v{X+2*i}, v{X+2*i+1}")
    unpack(a, X, P)
    normalize(a, R, X, M + 4, M + 6)
    for i in range(0, 20, 2):
        a(f"v_pk_mul_f32 v[{X+i}:{X+i+1}], v[{X+i}:{X+i+1}], v[{M+6}:{M+7}]")
    for i in range(10):
        a(f"v_cvt_pk_bf16_f32 v{P+i}, v{X+2*i}, v{X+2*i+1}")
    a(f"s_lshl_b32 s{t0}, s{R['s_wave']}, 1")
    a(f"v_lshrrev_b32 v{vt0}, 5, v{vl}")
    a(f"v_add_u32 v{vt0}, s{t0}, v{vt0}")
    a(f"v_lshlrev_b32 v{X}, 3, v{vt0}")
    a(f"v_add_u32 v{X}, {R['ln_lds'] + 16 * LN_PITCH}, v{X}")
    a(f"v_mul_u32_u24 v{vt0}, {LN_PITCH}, v{vt0}")
    a(f"v_and_b32 v{vt1}, 31, v{vl}")
    a(f"v_lshl_add_u32 v{vt0}, v{vt1}, 3, v{vt0}")
    if R["ln_lds"]: a(f"v_add_u32 v{vt0}, {R['ln_lds']}, v{vt0}")
    for m in range(5):
        a(f"ds_write_b64 v{vt0}, v[{P+2*m}:{P+2*m+1}] offset:{m*256}")
    a("s_mov_b32 s4, 1")
    a("s_mov_b32 s5, 1")
    a("s_mov_b64 exec, s[4:5]")
    a(f"ds_write_b64 v{X}, v[{M}:{M+1}]")
    a("s_mov_b64 exec, -1")
    a("s_waitcnt lgkmcnt(0)")

def ln_store(a, R, s_blk):
    vl = R["v_lane"]; X = R["v_lx"]
    t0, t1 = R["s_t0"], R["s_t1"]; vt0, vt1, vt2 = R["v_t0"], R["v_t1"], R["v_t2"]
    a(f"v_lshrrev_b32 v{vt0}, 4, v{vl}")
    a(f"v_and_b32 v{vt1}, 15, v{vl}")
    a(f"v_and_b32 v{vt2}, 1, v{vt0}")
    a(f"v_lshlrev_b32 v{vt2}, 3, v{vt2}")
    a(f"v_lshrrev_b32 v{X}, 2, v{vt1}")
    a(f"v_add_u32 v{vt2}, v{vt2}, v{X}")
    a(f"v_mul_u32_u24 v{vt2}, {LN_PITCH}, v{vt2}")
    a(f"v_and_b32 v{X}, 3, v{vt1}")
    a(f"v_lshl_add_u32 v{vt2}, v{X}, 3, v{vt2}")
    a(f"v_lshrrev_b32 v{X}, 1, v{vt0}")
    a(f"v_lshl_add_u32 v{vt2}, v{X}, 5, v{vt2}")
    a(f"s_lshl_b32 s{t0}, s{R['s_wave']}, 6")
    a(f"s_add_u32 s{t0}, s{t0}, {R['ln_lds']}")
    a(f"v_add_u32 v{vt2}, s{t0}, v{vt2}")
    for m in range(5):
        for rho in range(2):
            o = X + 4 + 4 * m
            a(f"ds_read_b64_tr_b16 v[{o+2*rho}:{o+2*rho+1}], v{vt2} offset:{m*256 + rho*4*LN_PITCH}")
    a(f"v_and_b32 v{X+1}, 31, v{vl}")
    a(f"v_lshlrev_b32 v{X+1}, 4, v{X+1}")
    a(f"v_lshl_add_u32 v{X+1}, v{X}, 16, v{X+1}")
    a(f"s_lshr_b32 s{t0}, s{s_blk}, 1")
    a(f"s_lshl_b32 s{t0}, s{t0}, 10")
    a(f"s_and_b32 s{t1}, s{s_blk}, 1")
    a(f"s_lshl_b32 s{t1}, s{t1}, 9")
    a(f"s_add_u32 s{t0}, s{t0}, s{t1}")
    a(f"s_lshl_b32 s{t1}, s{R['s_wave']}, 17")
    a(f"s_add_u32 s{t0}, s{t0}, s{t1}")
    for m in range(5):
        o = X + 4 + 4 * m
        a(f"s_waitcnt lgkmcnt({8 - 2*m})")
        a(f"buffer_store_dwordx4 v[{o}:{o+3}], v{X+1}, {srd(R['srd_h'])}, s{t0} offen {R.get('aux_st','')}")
        if m < 4: a(f"s_add_u32 s{t0}, s{t0}, {4 * 2 * 65536}")
    sk = a.uid("Lst")
    a(f"s_cmp_lg_u32 s{R['s_wave']}, 0")
    a(f"s_cbranch_scc1 {sk}")
    a(f"v_lshlrev_b32 v{vt0}, 4, v{vl}")
    a(f"v_add_u32 v{vt1}, {R['ln_lds'] + 16 * LN_PITCH}, v{vt0}")
    a("s_mov_b64 exec, 0xff")
    a(f"ds_read_b128 v[{X+24}:{X+27}], v{vt1}")
    a(f"s_lshl_b32 s{t0}, s{s_blk}, 7")
    a("s_waitcnt lgkmcnt(0)")
    a(f"buffer_store_dwordx4 v[{X+24}:{X+27}], v{vt0}, {srd(R['srd_st'])}, s{t0} offen {R.get('aux_st','')}")
    a("s_mov_b64 exec, -1")
    a.label(sk)

def regs_ln():
    return dict(s_wave=40, s_t0=44, s_t1=45, s_row0=46, srd_x=60, srd_h=64, srd_st=68,
                v_lane=1, v_t0=2, v_t1=3, v_t2=4, v_la=6, v_lt=10, v_ls=12, v_lm=14, v_lp=22, v_lx=32, ln_lds=0)

def emit_ln_kernel(a, name="ln_kernel"):
    R = regs_ln()
    kernel_header(a, name)
    a(f"s_cmp_ge_u32 s2, 128")
    a(f"s_cbranch_scc1 {name}_end")
    stamp_init(a)
    stamp(a, 0)
    load_kernargs(a)
    wave_ids(a, R)
    a(f"s_lshl_b32 s{R['s_row0']}, s2, 4")
    a("s_waitcnt lgkmcnt(0)")
    make_srd(a, R["srd_x"], P_X, X_BYTES)
    make_srd(a, R["srd_h"], P_WS, WS_H_BYTES, WS_H)
    make_srd(a, R["srd_st"], P_WS, WS_ST_BYTES, WS_ST)
    ln_loads(a, R, R["s_row0"])
    a("s_waitcnt vmcnt(0)")
    ln_compute(a, R)
    a("s_barrier")
    a(f"s_cmp_ge_u32 s{R['s_wave']}, 4")
    a(f"s_cbranch_scc1 {name}_done")
    ln_store(a, R, 2)
    a.label(f"{name}_done")
    a("s_waitcnt vmcnt(0)")
    stamp(a, 1)
    stamp_flush(a, R['s_wave'], 2)
    a.label(f"{name}_end")
    a("s_endpgm")
    return kernel_desc(name, 64, 102, 64)
```

```python
import sys
import common
from common import *
import common as _c
import g3, p3, g2, ln, g1
from g3 import wave_ids

NAME = "parallel_sum__sliding_local_dilated__mixer_token_mlp__prompt_kernel"
LDS_TOTAL = 163840
XCH = 122880
SRD_E, SRD_DBG, SRD_FLAG = 4, 8, 12
FLAG_O, FLAG_U, FLAG_P = 0, 16 * 128, 24 * 128
NFLAG = 16 + 8 + 128
SPIN_MAX = 1 << 18

BASE = dict(s_start=38, s_id=39, s_wave=40, s_l=41, s_t0=44, s_t1=45, s_t2=46, s_cnt=47, s_slot=48,
            s_soff_h=49, s_soff_w=50, s_mb=51, s_mbbeg=52, s_mbend=53, s_delta=54,
            v_lane=1, v_t0=2, v_t1=3, v_t2=4, a_frag=0, lds_base=0, aux_h="sc1", aux_st="sc1", xch_base=XCH)

def R_ln():
    R = ln.regs_ln(); R.update(BASE); R.update(srd_x=60, srd_h=64, srd_st=68, ln_lds=5 * g3.G3_STAGE, s_row0=58); return R
def R_g3():
    R = g3.regs_g3(); R.update(BASE); R.update(srd_h=64, srd_w1=72, srd_b1=68, srd_u=60, v_ld=60 - 8); return R
def R_p3():
    R = p3.regs_p3(); R.update(BASE); R.update(srd_u=60, srd_w2=72, srd_p=64, srd_out=68, xch_base=0); return R
def R_g2():
    R = g2.regs_g2(); R.update(BASE); R.update(srd_o=60, srd_wo=72, srd_p=64, srd_x=68, srd_b2=SRD_E); return R
def R_g1():
    R = g1.regs_g1(); R.update(BASE); R.update(srd_x=60, srd_wq=64, srd_st=68, srd_o=72, s_mask=76, s_maskw=92, s_xmask=56, v_t3=5); return R

def poll(a, R, vt, items, tag):
    n = len(items)
    vo, vw, vs, vm, vv = vt, vt + 1, vt + 2, vt + 3, vt + 4
    srds = set(i[0] for i in items)
    lp = a.uid("Lpoll" + tag); done = a.uid("Lpolld" + tag)
    a(f"s_mov_b32 s3, {SPIN_MAX}")
    groups = {}
    for i, it in enumerate(items): groups.setdefault(it[0], []).append((i, it))
    a(f"v_mov_b32 v{vo}, 0")
    a(f"v_mov_b32 v{vw}, 0")
    a(f"v_mov_b32 v{vs}, 0")
    for i, (sd, off, sh, mask, want) in enumerate(items):
        if isinstance(off, tuple): a(f"v_writelane_b32 v{vo}, s{off[1]}, {i}")
        else:
            a(f"s_mov_b32 vcc_lo, {off}")
            a(f"v_writelane_b32 v{vo}, vcc_lo, {i}")
        a(f"s_mov_b32 vcc_lo, {want}")
        a(f"v_writelane_b32 v{vw}, vcc_lo, {i}")
    a.label(lp)
    for g, (sd, its) in enumerate(groups.items()):
        lanes = sum(1 << i for i, _ in its)
        a(f"s_mov_b64 exec, {lanes}")
        a(f"buffer_load_dword v{vv}, v{vo}, {srd(sd)}, 0 offen sc1")
    a(f"s_mov_b64 exec, {(1 << n) - 1}")
    a("s_waitcnt vmcnt(0)")
    a(f"v_cmp_lt_u32 vcc, v{vv}, v{vw}")
    a("s_nop 3")
    a(f"s_cmp_eq_u64 vcc, 0")
    a(f"s_cbranch_scc1 {done}")
    a("s_sleep 1")
    a("s_sub_u32 s3, s3, 1")
    a("s_cmp_lg_u32 s3, 0")
    a(f"s_cbranch_scc1 {lp}")
    a.label(done)
    a("s_mov_b64 exec, -1")

def arrive(a, sd, off, vt):
    a("s_mov_b64 exec, 1")
    if isinstance(off, tuple): a(f"v_mov_b32 v{vt}, s{off[1]}")
    else: a(f"v_mov_b32 v{vt}, {off}")
    a(f"v_mov_b32 v{vt+1}, 1")
    a(f"buffer_atomic_add v{vt+1}, v{vt}, {srd(sd)}, 0 offen sc1")
    a("s_mov_b64 exec, -1")

S1_ITEMS = [(SRD_DBG, 64 * i, None, None, 32) for i in range(4)]

def p3_phase(a, R3, name, after_prefetch_label):
    pass

def emit_p3_loader_pre(a, R, variant):
    L, n = p3.p3_loader_setup(a, R, variant)
    emit_loader_part_prologue(a, L, dep=False)
    return L, n

def p3_srds(a, R):
    make_srd(a, R["srd_u"], P_WS, WS_U_BYTES, WS_U)
    make_srd(a, R["srd_w2"], P_W2, W2_BYTES)
    make_srd(a, R["srd_p"], P_WS, WS_P_BYTES, WS_P)
    make_srd(a, R["srd_out"], P_OUT, OUT_BYTES)

def p3_wait_items(a, R):
    a(f"s_lshl_b32 s57, s{R['s_dt']}, 7")
    a(f"s_add_u32 s57, s57, {FLAG_U}")
    a(f"s_lshr_b32 s58, s{R['s_st']}, 1")
    a(f"s_lshl_b32 s58, s58, 3")
    a(f"s_add_u32 s58, s58, s{R['s_dt']}")
    a(f"s_lshl_b32 s58, s58, 7")
    a(f"s_add_u32 s58, s58, {FLAG_P}")
    return [(SRD_FLAG, ("s", 57), None, None, 14), (SRD_FLAG, ("s", 58), None, None, 1)]

def emit_mega(a):
    name = NAME
    RL, R3g, RP, R2, R1 = R_ln(), R_g3(), R_p3(), R_g2(), R_g1()
    W = BASE["s_wave"]; vt = 2
    kernel_header(a, name)
    a("s_cmp_ge_u32 s2, 256")
    a(f"s_cbranch_scc1 L_end")
    stamp_init(a)
    load_kernargs(a)
    wave_ids(a, RL)
    stamp(a, 0)
    a(f"s_sub_u32 s{BASE['s_l']}, s{W}, 4")
    a("s_waitcnt lgkmcnt(0)")
    make_srd(a, SRD_DBG, P_DBG, 256)
    make_srd(a, SRD_FLAG, P_WS, NFLAG * 128, WS_FLAGS)
    a("s_cmp_ge_u32 s2, 128")
    a("s_cbranch_scc1 L_roleA")

    R = RL
    make_srd(a, R["srd_x"], P_X, X_BYTES)
    make_srd(a, R["srd_h"], P_WS, WS_H_BYTES, WS_H)
    make_srd(a, R["srd_st"], P_WS, WS_ST_BYTES, WS_ST)
    a(f"s_lshl_b32 s{R['s_row0']}, s2, 4")
    ln.ln_loads(a, R, R["s_row0"])
    for i in range(7): a(f"v_mov_b32 v{R3g['v_ld'] + i}, 0")
    g3.g3_map(a, R3g, 2)
    make_srd(a, R3g["srd_w1"], P_W1, W1_BYTES)
    a(f"s_cmp_ge_u32 s{W}, 4")
    a("s_cbranch_scc1 LB_ldpre")
    a("s_waitcnt vmcnt(0)")
    a("s_branch LB_ln")
    a.label("LB_ldpre")
    a("s_cmp_ge_u32 s2, 112")
    a("s_cbranch_scc1 LB_ldpre_none")
    a(f"s_cmp_ge_u32 s{BASE['s_l']}, 2")
    a("s_cbranch_scc1 LB_ldpreB")
    G3L = {}
    for variant in range(2):
        if variant == 1: a.label("LB_ldpreB")
        L, n = g3.g3_loader_setup(a, R3g, variant)
        nw = emit_loader_part_prologue(a, L, dep=False)
        G3L[variant] = (L, n)
        a(f"s_waitcnt vmcnt({nw * (g3.G3_S - 1)})")
        a("s_branch LB_ln")
    a.label("LB_ldpre_none")
    a("s_waitcnt vmcnt(0)")
    a.label("LB_ln")
    stamp(a, 1)
    ln.ln_compute(a, R)
    a("s_barrier")
    a(f"s_cmp_ge_u32 s{W}, 4")
    a("s_cbranch_scc1 LB_lnL")
    ln.ln_store(a, R, 2)
    a("s_cmp_lg_u32 s2, 0")
    a("s_cbranch_scc1 LB_nozero")
    a(f"s_cmp_lg_u32 s{W}, 1")
    a("s_cbranch_scc1 LB_nozero")
    a(f"v_lshlrev_b32 v{vt}, 7, v1")
    a(f"v_mov_b32 v{vt+1}, 0")
    for m in range(3):
        a(f"buffer_store_dword v{vt+1}, v{vt}, {srd(SRD_FLAG)}, 0 offen sc1")
        a(f"v_add_u32 v{vt}, 8192, v{vt}")
    a.label("LB_nozero")
    a("s_waitcnt vmcnt(0)")
    a("s_barrier")
    stamp(a, 2)
    a(f"s_cmp_lg_u32 s{W}, 0")
    a("s_cbranch_scc1 LB_c_wait")
    a("s_and_b32 s3, s2, 3")
    a("s_lshl_b32 s59, s3, 6")
    arrive(a, SRD_DBG, ("s", 59), vt)
    poll(a, R, vt, S1_ITEMS, "S1")
    a.label("LB_c_wait")
    a("s_barrier")
    stamp(a, 3)
    a("s_cmp_ge_u32 s2, 112")
    a("s_cbranch_scc1 LB_c_p3pre")
    R = R3g
    make_srd(a, R["srd_b1"], P_B1, F_ * 2)
    make_srd(a, R["srd_u"], P_WS, WS_U_BYTES, WS_U)
    g3.g3_bias_load(a, R)
    g3.g3_consumer_setup(a, R)
    g3.g3_acc_init(a, R)
    g3.g3_consumer(a, R)
    stamp(a, 4)
    g3.g3_epilogue(a, R)
    a("s_waitcnt vmcnt(0)")
    a("s_barrier")
    stamp(a, 5)
    a(f"s_cmp_lg_u32 s{W}, 0")
    a("s_cbranch_scc1 L_c_p3")
    a(f"s_lshl_b32 s59, s{R['s_dt']}, 7")
    a(f"s_add_u32 s59, s59, {FLAG_U}")
    arrive(a, SRD_FLAG, ("s", 59), vt)
    a("s_branch L_c_p3")
    a.label("LB_c_p3pre")
    a("s_branch L_c_p3")
    a.label("LB_lnL")
    a("s_barrier")
    a("s_barrier")
    a("s_cmp_ge_u32 s2, 112")
    a("s_cbranch_scc1 L_l_p3pre")
    a(f"s_cmp_ge_u32 s{BASE['s_l']}, 2")
    a("s_cbranch_scc1 LB_g3B")
    for variant in range(2):
        if variant == 1: a.label("LB_g3B")
        L, n = G3L[variant]
        emit_loader_part_prologue(a, L, dep=True)
        emit_loader_main(a, L, n, split=True)
        if variant == 0: a("s_branch LB_g3done")
    a.label("LB_g3done")
    a("s_mov_b32 s59, 2")
    a("s_branch L_l_p3pre2")

    a.label("L_roleA")
    R = R1
    a(f"s_sub_u32 s{BASE['s_id']}, s2, 128")
    g1.g1_map(a, R, BASE["s_id"])
    make_srd(a, R["srd_x"], P_X, X_BYTES)
    make_srd(a, R["srd_wq"], P_WQKV, WQKV_BYTES)
    make_srd(a, R["srd_st"], P_WS, WS_ST_BYTES, WS_ST)
    make_srd(a, R["srd_o"], P_WS, WS_O_BYTES, WS_O)
    a(f"s_cmp_ge_u32 s{W}, 4")
    a("s_cbranch_scc1 LA_loader")
    def hook(a):
        sk = a.uid("Lhk"); sk2 = a.uid("Lhk")
        a(f"s_cmp_lg_u32 s{R['s_cnt']}, 4")
        a(f"s_cbranch_scc1 {sk}")
        a("v_lshlrev_b32 v36, 6, v1")
        a("s_mov_b64 exec, 0xf")
        a(f"buffer_load_dword v37, v36, {srd(SRD_DBG)}, 0 offen sc1")
        a("s_mov_b64 exec, -1")
        a.label(sk)
        a(f"s_cmp_lg_u32 s{R['s_cnt']}, 2")
        a(f"s_cbranch_scc1 {sk2}")
        a("s_waitcnt vmcnt(0)")
        a("s_mov_b64 exec, 0xf")
        a("v_cmp_gt_u32 vcc, 32, v37")
        a("s_mov_b64 exec, -1")
        a("s_nop 3")
        a("s_cmp_eq_u64 vcc, 0")
        a(f"s_cbranch_scc0 {sk2}")
        a("s_mov_b32 s58, 1")
        g1.g1_stats_load(a, R)
        a.label(sk2)
    R["hook"] = hook
    a("s_mov_b32 s58, 0")
    g1.g1_consumer_setup(a, R)
    stamp(a, 1)
    g1.g1_consumer(a, R)
    stamp(a, 2)
    a("s_cmp_eq_u32 s58, 1")
    a("s_cbranch_scc1 LA_havestats")
    poll(a, R, 28, S1_ITEMS, "S1a")
    g1.g1_stats_load(a, R)
    a.label("LA_havestats")
    g1.g1_qkv_write(a, R)
    a("s_branch LA_att")
    a.label("LA_loader")
    a(f"s_cmp_ge_u32 s{BASE['s_l']}, 2")
    a("s_cbranch_scc1 LA_loaderB")
    for variant in range(2):
        if variant == 1: a.label("LA_loaderB")
        L, n = g1.g1_loader_setup(a, R, variant)
        emit_loader_prologue(a, L, n, g1.G1_S - 1)
        emit_loader_main(a, L, n)
        if variant == 0: a("s_branch LA_pad")
    a.label("LA_pad")
    g1.g1_pad_zero(a, R)
    a.label("LA_att")
    a("s_barrier")
    stamp(a, 3)
    g1.g1_attention(a, R)
    a("s_barrier")
    stamp(a, 4)
    RG = R2
    RG["s_rt"] = R["s_rt"]; RG["s_dj"] = R["s_hg"]
    a(f"s_cmp_ge_u32 s{W}, 4")
    a("s_cbranch_scc1 LA_g2ld")
    g1.g1_o_store(a, R)
    make_srd(a, RG["srd_o"], P_WS, WS_O_BYTES, WS_O)
    make_srd(a, RG["srd_p"], P_WS, WS_P_BYTES, WS_P)
    make_srd(a, RG["srd_x"], P_X, X_BYTES)
    make_srd(a, RG["srd_b2"], P_B2, S_ * 2)
    g2.g2_consumer_setup(a, RG)
    g2.g2_resid_load(a, RG)
    g2.g2_acc_init(a, RG)
    a("s_barrier")
    stamp(a, 5)
    a(f"s_cmp_lg_u32 s{W}, 0")
    a("s_cbranch_scc1 LA_c_wait")
    a(f"s_lshl_b32 s59, s{RG['s_rt']}, 7")
    arrive(a, SRD_FLAG, ("s", 59), vt)
    poll(a, RG, 16, [(SRD_FLAG, ("s", 59), None, None, 8)], "S2")
    a.label("LA_c_wait")
    a("s_barrier")
    stamp(a, 6)
    g2.g2_consumer(a, RG)
    stamp(a, 7)
    g2.g2_epilogue(a, RG)
    a("s_waitcnt vmcnt(0)")
    a("s_barrier")
    stamp(a, 8)
    a(f"s_cmp_lg_u32 s{W}, 0")
    a("s_cbranch_scc1 L_c_p3")
    a(f"s_lshl_b32 s59, s{RG['s_rt']}, 3")
    a(f"s_add_u32 s59, s59, s{RG['s_dj']}")
    a(f"s_lshl_b32 s59, s59, 7")
    a(f"s_add_u32 s59, s59, {FLAG_P}")
    arrive(a, SRD_FLAG, ("s", 59), vt)
    a("s_branch L_c_p3")
    a.label("LA_g2ld")
    make_srd(a, RG["srd_o"], P_WS, WS_O_BYTES, WS_O)
    make_srd(a, RG["srd_wo"], P_WO, WO_BYTES)
    a(f"s_cmp_ge_u32 s{BASE['s_l']}, 2")
    a("s_cbranch_scc1 LA_g2ldB")
    for variant in range(2):
        if variant == 1: a.label("LA_g2ldB")
        L, n = g2.g2_loader_setup(a, RG, variant)
        emit_loader_part_prologue(a, L, dep=False)
        a("s_barrier")
        a("s_barrier")
        emit_loader_part_prologue(a, L, dep=True)
        emit_loader_main(a, L, n, split=True)
        if variant == 0: a("s_branch LA_g2done")
    a.label("LA_g2done")
    a("s_mov_b32 s59, 2")
    a("s_branch L_l_p3pre2")

    R = RP
    a.label("L_l_p3pre")
    a("s_mov_b32 s59, 0")
    a.label("L_l_p3pre2")
    p3.p3_map(a, R, 2)
    p3_srds(a, R)
    a(f"s_cmp_ge_u32 s{BASE['s_l']}, 2")
    a("s_cbranch_scc1 L_p3ldB")
    for variant in range(2):
        if variant == 1: a.label("L_p3ldB")
        L, n = emit_p3_loader_pre(a, R, variant)
        lp = a.uid("Lowe"); dn = a.uid("Lowed")
        a.label(lp)
        a("s_cmp_eq_u32 s59, 0")
        a(f"s_cbranch_scc1 {dn}")
        a("s_barrier")
        a("s_sub_u32 s59, s59, 1")
        a(f"s_branch {lp}")
        a.label(dn)
        a("s_barrier")
        emit_loader_part_prologue(a, L, dep=True)
        emit_loader_main(a, L, n, split=True)
        a("s_barrier")
        stamp(a, 12)
        stamp_flush(a, W, 2)
        a("s_endpgm")
    a.label("L_c_p3")
    p3.p3_map(a, R, 2)
    p3_srds(a, R)
    items = p3_wait_items(a, R)
    p3.p3_consumer_setup(a, R)
    a(f"s_cmp_lg_u32 s{W}, 0")
    a("s_cbranch_scc1 L_c_p3w")
    poll(a, R, 16, S1_ITEMS + items, "S3")
    a.label("L_c_p3w")
    a("s_barrier")
    stamp(a, 9)
    p3.p3_partial_load(a, R)
    a("s_waitcnt vmcnt(0)")
    p3.p3_consumer(a, R)
    stamp(a, 10)
    p3.p3_epilogue(a, R)
    a("s_waitcnt vmcnt(0)")
    stamp(a, 11)
    stamp_flush(a, W, 2)
    a.label("L_end")
    a("s_endpgm")
    return kernel_desc(name, 256, 102, 184)

if __name__ == "__main__":
    from build_test import build
    HDR = open("parallel_sum__sliding_local_dilated__mixer_token_mlp__prompt.s.ref").read().split("; Override launch")[0]
    p3.P3_S = 6
    def gen(path, stampmode, exp=None):
        common.STAMP = stampmode; common.EXP = exp or {}
        t = build([emit_mega], [(NAME, 256, 512, LDS_TOTAL)])
        t = t.replace(f"; @launch kernel={NAME} grid", "; @launch grid")
        open(path, "w").write(HDR + t)
    gen("mega.s", False)
    gen("mega_st.s", 1)
    gen("mega_cy.s", 2)
```
